```python
import torch

def _softmax(x, axis=-1):
    return torch.softmax(x, dim=axis)
def _gelu(x):
    return torch.nn.functional.gelu(x, approximate="tanh")
def _silu(x):
    return torch.nn.functional.silu(x)
def _sigmoid(x):
    return torch.sigmoid(x)
def _layernorm(x, axis=-1, eps=1e-5):
    m = x.mean(dim=axis, keepdim=True)
    v = x.var(dim=axis, keepdim=True, unbiased=False)
    return (x - m) / torch.sqrt(v + eps)
def _scatter_add(tgt, idx, src, axis=0):
    return tgt.clone().index_add_(axis, idx, src)
def _segment_sum(src, seg, n):
    out = torch.zeros((n,) + src.shape[1:], dtype=src.dtype)
    return out.index_add_(0, seg, src)
def _pad(x, pw):
    flat = tuple(v for pair in reversed(pw) for v in pair)
    return torch.nn.functional.pad(x, flat)

kernel_name = 'sequential_preLN__compressed_kv_cla__glu_gated_reglu__decode'

def setup_inputs():

    _w = (lambda a: (lambda t: t.to(torch.bfloat16) if t.is_floating_point() else t)(torch.as_tensor(a)))
    def _A_setup():
        B, H, Sq, Sk, D, M = 4, 32, 1, 4096, 128, 512
        Dc = 4 * D
        return {
            "x": _w((lambda *s: torch.randn(*s, dtype=torch.bfloat16) * 0.05)(B, Sq, M)),
            "c_kv": _w((lambda *s: torch.randn(*s, dtype=torch.bfloat16) * 0.8)(B, Sk, Dc)),
            "w_q": _w((lambda *s: torch.randn(*s, dtype=torch.bfloat16) * 1.6)(M, H, D) * (M ** -0.5)),
            "w_uk": _w((lambda *s: torch.randn(*s, dtype=torch.bfloat16) * 1.6)(Dc, H, D) * (Dc ** -0.5)),
            "w_uv": _w((lambda *s: torch.randn(*s, dtype=torch.bfloat16) * 0.8)(Dc, H, D) * (Dc ** -0.5)),
            "w_o": _w((lambda *s: torch.randn(*s, dtype=torch.bfloat16) * 0.8)(H, D, M) * ((H * D) ** -0.5)),
        }
    _A_in = _A_setup()

    def _B_setup():
        B, S, D, F = 4, 1, 512, 1792
        return {
            "x": _w((lambda *s: torch.randn(*s, dtype=torch.bfloat16) * 0.05)(B, S, D)),
            "W_gate": _w((lambda *s: torch.randn(*s, dtype=torch.bfloat16) * 0.4)(D, F) * (2.0 / D) ** 0.5),
            "W_up": _w((lambda *s: torch.randn(*s, dtype=torch.bfloat16) * 0.4)(D, F) * (2.0 / D) ** 0.5),
            "W_down": _w((lambda *s: torch.randn(*s, dtype=torch.bfloat16) * 0.4)(F, D) * (1.0 / F) ** 0.5),
        }
    _B_in = _B_setup()

    return {
        "A_x": _A_in["x"],
        "A_c_kv": _A_in["c_kv"],
        "A_w_q": _A_in["w_q"],
        "A_w_uk": _A_in["w_uk"],
        "A_w_uv": _A_in["w_uv"],
        "A_w_o": _A_in["w_o"],
        "B_x": _B_in["x"],
        "B_W_gate": _B_in["W_gate"],
        "B_W_up": _B_in["W_up"],
        "B_W_down": _B_in["W_down"],
    }

def reference(A_x, A_c_kv, A_w_q, A_w_uk, A_w_uv, A_w_o, B_x, B_W_gate, B_W_up, B_W_down):
    def _A_ref(x, c_kv, w_q, w_uk, w_uv, w_o):
        B, Sq, M = x.shape[0], x.shape[1], x.shape[2]
        Sk = c_kv.shape[1]
        H, D = w_q.shape[1], w_q.shape[2]
        q = torch.einsum("bqm,mhd->bhqd", x, w_q)
        k = torch.einsum("bkc,chd->bhkd", c_kv, w_uk)
        v = torch.einsum("bkc,chd->bhkd", c_kv, w_uv)
        scores = torch.einsum("bhqd,bhkd->bhqk", q, k) * (D ** -0.5)
        off = Sk - Sq
        qi = torch.arange(Sq)[:, None]
        kj = torch.arange(Sk)[None, :]
        cmask = kj <= (qi + off)
        scores = torch.where(cmask[None, None], scores, -1e9)
        p = _softmax(scores, axis=-1)
        ctx = torch.einsum("bhqk,bhkd->bhqd", p, v)
        return torch.einsum("bhqd,hdm->bqm", ctx, w_o)

    def _B_ref(x, W_gate, W_up, W_down):
        gate = torch.einsum("bsd,df->bsf", x, W_gate)
        up = torch.einsum("bsd,df->bsf", x, W_up)
        gate = gate * (lambda x, dt: x.to(dt))(gate > 0, gate.dtype)
        h = gate * up
        return torch.einsum("bsf,fd->bsd", h, W_down)

    x = A_x
    h = x + _A_ref(_layernorm(x, axis=-1), A_c_kv, A_w_q, A_w_uk, A_w_uv, A_w_o)
    h2 = h + _B_ref(_layernorm(h, axis=-1), B_W_gate, B_W_up, B_W_down)
    return h2
```

```python
NAME = "sequential_preLN__compressed_kv_cla__glu_gated_reglu__decode"
SIZES = dict(x=4096, ckv=16777216, wq=4194304, wuk=4194304, wuv=4194304, wo=4194304, bx=4096,
             wg=1835008, wu=1835008, wd=1835008, out=4096, dbg=256, ws=268435456)
KOFF = dict(x=0, ckv=8, wq=16, wuk=24, wuv=32, wo=40, bx=48, wg=56, wu=64, wd=72, out=80, dbg=88, ws=96)

class Asm:
    def __init__(self):
        self.L = []
    def __call__(self, s):
        for line in s.strip("\n").split("\n"):
            self.L.append(line)
    def text(self):
        return "\n".join(self.L) + "\n"

def header(launches):
    s = ""
    for k, g, b, l in launches:
        if k is None:
            s += f"; @launch grid=({g},1,1) block=({b},1,1) lds={l}\n"
        else:
            s += f"; @launch kernel={k} grid=({g},1,1) block=({b},1,1) lds={l}\n"
    s += '.amdgcn_target "amdgcn-amd-amdhsa--gfx950"\n.text\n'
    return s

def kstart(name):
    return f".globl {name}\n.p2align 8\n.type {name},@function\n{name}:\n"

def kdesc(name, vgpr=256, sgpr=102, accum=None, agpr=0):
    if accum is None:
        accum = (vgpr + 3) // 4 * 4
    nfv = accum + agpr if agpr else vgpr
    return f""".section .rodata,"a"
.p2align 6
.amdhsa_kernel {name}
  .amdhsa_next_free_vgpr {nfv}
  .amdhsa_next_free_sgpr {sgpr}
  .amdhsa_accum_offset {accum}
  .amdhsa_group_segment_fixed_size 0
  .amdhsa_kernarg_size 104
  .amdhsa_user_sgpr_count 2
  .amdhsa_user_sgpr_kernarg_segment_ptr 1
  .amdhsa_system_sgpr_workgroup_id_x 1
.end_amdhsa_kernel
.text
"""

def srd(dst, src, size):
    return f"""s_mov_b32 s{dst}, s{src}
s_and_b32 s{dst+1}, s{src+1}, 0xffff
s_mov_b32 s{dst+2}, {size}
s_mov_b32 s{dst+3}, 0x20000
"""
```

```python
import re
TRANS = ("v_exp_f32", "v_log_f32", "v_rcp_f32", "v_rsq_f32", "v_sqrt_f32", "v_sin_f32", "v_cos_f32")

def regs(tok):
    tok = tok.strip()
    tok = tok.lstrip("-")
    m = re.match(r"^(?:abs\()?([vas])TMP$", tok)
    tok = re.sub(r"^abs\((.*)\)$", r"\1", tok)
    tok = tok.strip("|")
    if tok == "vcc": return {("s", 106), ("s", 107)}
    if tok == "vcc_lo": return {("s", 106)}
    if tok == "vcc_hi": return {("s", 107)}
    if tok == "exec": return {("s", 126), ("s", 127)}
    if tok == "m0": return {("s", 124)}
    m = re.match(r"^([vas])(\d+)$", tok)
    if m: return {(m.group(1), int(m.group(2)))}
    m = re.match(r"^([vas])\[(\d+):(\d+)\]$", tok)
    if m: return {(m.group(1), i) for i in range(int(m.group(2)), int(m.group(3)) + 1)}
    return set()

def split_ops(s):
    out, depth, cur = [], 0, ""
    for ch in s:
        if ch in "[(": depth += 1
        if ch in "])": depth -= 1
        if ch == "," and depth == 0:
            out.append(cur.strip()); cur = ""
        else:
            cur += ch
    if cur.strip(): out.append(cur.strip())
    return out

class I:
    pass

def parse(line):
    s = line.split(";")[0].strip()
    if not s or s.endswith(":") or s.startswith("."): return None
    parts = s.split(None, 1)
    mn = parts[0]
    rest = parts[1] if len(parts) > 1 else ""
    ops = split_ops(rest)
    mods = ""
    if ops:
        sp = ops[-1].split(None, 1)
        if len(sp) > 1:
            ops[-1] = sp[0]; mods = sp[1]
    i = I(); i.mn = mn; i.ops = ops; i.mods = mods
    i.w = set(); i.r = set(); i.kind = "other"; i.ws = 1
    i.passes = 0; i.A = i.B = i.C = set(); i.dpp = False; i.data = set(); i.wide = False
    R = [regs(o) for o in ops]
    U = lambda l: set().union(*l) if l else set()
    if mn == "s_nop":
        i.ws = int(ops[0], 0) + 1; i.kind = "salu"
    elif mn.startswith("v_mfma"):
        i.kind = "mfma"; i.w = R[0]; i.A, i.B, i.C = R[1], R[2], R[3]; i.r = R[1] | R[2] | R[3]
        i.passes = 8 if "32x32x16" in mn else 4
    elif mn.startswith("v_"):
        i.kind = "valu"
        i.dpp = "_dpp" in mn or "row_" in mods or "quad_perm" in mods
        if mn.startswith("v_cmp"):
            i.w = R[0]; i.r = U(R[1:])
        elif mn.startswith("v_permlane"):
            i.w = R[0] | R[1]; i.r = R[0] | R[1]
        elif "_co_" in mn:
            i.w = R[0] | R[1]; i.r = U(R[2:])
        else:
            i.w = R[0]; i.r = U(R[1:])
            if mn.startswith(("v_fmac", "v_dot2c", "v_writelane")): i.r |= R[0]
            if i.dpp: i.r |= R[0]
    elif mn.startswith(("buffer_", "global_")):
        i.kind = "vmem"
        if mn.startswith(("buffer_wbl2", "buffer_inv")):
            pass
        elif "lds" in mods.split() or "_lds_" in mn:
            i.r = U(R) | {("s", 124)}; i.lds = True
        elif "load" in mn:
            i.w = R[0]; i.r = U(R[1:])
        else:
            i.r = U(R)
            i.data = R[0] if mn.startswith("buffer_") else R[1]
            i.wide = mn.endswith(("x3", "x4"))
    elif mn.startswith("ds_"):
        i.kind = "ds"
        if mn.startswith(("ds_read", "ds_bpermute", "ds_permute", "ds_swizzle")) or "_rtn" in mn:
            i.w = R[0]; i.r = U(R[1:])
        else:
            i.r = U(R)
    elif mn.startswith("s_"):
        i.kind = "salu"
        if not mn.startswith(("s_cmp", "s_cbranch", "s_branch", "s_waitcnt", "s_barrier", "s_endpgm", "s_sleep", "s_setprio", "s_bitcmp")) and R:
            i.w = R[0]; i.r = U(R[1:])
    return i

def vg(s): return {x for x in s if x[0] in "va"}
def sg(s): return {x for x in s if x[0] == "s"}

def need(p, c):
    n = 0
    if p.kind == "valu":
        pw = vg(p.w); ps = sg(p.w)
        isdot = p.mn.startswith("v_dot")
        if c.kind == "mfma" and pw & c.r: n = max(n, 3 if isdot else 2)
        if c.kind == "valu":
            if c.dpp and pw & vg(c.r): n = max(n, 2)
            if c.mn.startswith("v_permlane") and pw & c.r: n = max(n, 2)
            if c.mn.startswith(("v_readlane", "v_readfirstlane")) and pw & c.r: n = max(n, 1)
            if ps & sg(c.r): n = max(n, 4 if c.mn.startswith(("v_readlane", "v_writelane")) else 2)
            if c.mn.startswith("v_cndmask") and len(c.ops) == 3 and ps & regs("vcc"): n = max(n, 2)
            if p.mn in TRANS and pw & c.r and c.mn not in TRANS: n = max(n, 1)
            if p.mn in TRANS and pw & c.r: n = max(n, 1)
            if ("sdwa" in p.mn or "op_sel" in p.mods) and pw & (c.r | c.w): n = max(n, 1)
            if isdot and pw & (c.r | c.w):
                if c.mn == p.mn and not (pw & (regs(c.ops[1]) | regs(c.ops[2]))): pass
                else: n = max(n, 3)
        if c.kind in ("vmem", "ds") and isdot and pw & c.r: n = max(n, 3)
        if c.kind == "vmem" and ps & sg(c.r): n = max(n, 5)
        if c.kind == "salu" and ps & sg(c.r): n = max(n, 1)
    if p.kind == "mfma":
        big = 12 if p.passes == 8 else 8
        if c.kind == "mfma":
            if p.w & (c.A | c.B): n = max(n, big)
            if p.w & c.C:
                if not (p.w == c.C and p.passes == c.passes): n = max(n, big - 2)
            elif p.w & c.w: n = max(n, big)
        elif c.kind in ("valu", "vmem", "ds"):
            if p.w & (c.r | c.w): n = max(n, big)
            if c.kind == "valu" and p.C & c.w: n = max(n, 7 if p.passes == 8 else 3)
    if p.kind == "salu" and ("s", 124) in p.w and c.kind == "vmem" and ("s", 124) in c.r: n = max(n, 1)
    if p.kind == "vmem" and p.wide and p.data & c.w: n = max(n, 2 if c.kind in ("valu", "mfma") else 1)
    return n

def run(text):
    out = []
    hist = []
    inserted = 0
    for line in text.split("\n"):
        c = parse(line)
        if c is None:
            out.append(line); continue
        dist = 0; pad = 0
        for p in reversed(hist):
            k = need(p, c) - dist
            if k > pad: pad = k
            dist += p.ws
            if dist >= 13: break
        while pad > 0:
            k = min(pad, 16)
            out.append(f"s_nop {k-1}")
            n = I(); n.__dict__.update(parse(f"s_nop {k-1}").__dict__)
            hist.append(n); pad -= k; inserted += 1
        out.append(line)
        hist.append(c)
        if len(hist) > 16: hist = hist[-16:]
    return "\n".join(out), inserted
```

```python
import sys, math
from asmlib import *
import hazard

EPOCH = 0x0
READY = 0x1000
H1 = 0x10000
H2 = 0x80000
CLR = 0x100000
STATS = 0x100000
OC = 0x140000
OCS = 0x180000
CT = 0x190000
AT = 0x1A0000
OUTP = 0x1C0000
OPART = 0x1000000
STAMP = 0x4000000
L_CKV = 0x0
L_WQ = 0x10000
L_WUK = 0x14000
L_QIMG = 0x10000
L_CX = 0x10000
L_RX = 0x12000
L_XN = 0x14000
XN_STRIDE = 1056
L_ROLE = 0x18000
SCR = 0x26000
F_LD, F_GOQ = 0, 4
F_QOK, F_CKVFREE, F_PF, F_MXF, F_CXF, F_RXF, F_XNF, F_GUF = 16, 32, 48, 64, 80, 96, 112, 128
O_MX = 0x200
O_PX = 0x400
O_CS = 0x1400
O_GU = 0x1800
LDS_BYTES = 0x28000

SCALE_LOG2E = (128 ** -0.5) * math.log2(math.e)
import struct
def f2u(x): return struct.unpack("<I", struct.pack("<f", x))[0]

S_X, S_J, S_W = 3, 4, 5
S_T0, S_T1 = 6, 7
P = dict(x=8, ckv=10, wq=12, wuk=14, wuv=16, wo=18, bx=20, wg=22, wu=24, wd=26, out=28, dbg=30, ws=32)
S_CNT = 34
S_MODE = 35
SRD_WS = 36
SRD_A = 40
SRD_B = 44
SRD_C = 48
S_H = 52
S_I = 53
S_A, S_B, S_C, S_D, S_E, S_F = 54, 55, 56, 57, 58, 59
S_M0, S_M1, S_M2, S_M3 = 60, 62, 64, 66
S_TAG = 68
S_G = 69
S_EX = 70
S_ST = 72
LIMIT = 1 << 21

class G:
    def __init__(self, stamps=False, stop=99, lmode=False, nfront=20, nrole=12, prefetch=True):
        self.a = Asm()
        self.stamps = stamps
        self.stop = stop
        self.lmode = lmode
        self.nfront = nfront
        self.nrole = nrole
        self.prefetch = prefetch
        self.lab = 0
    def L(self, p="L"):
        self.lab += 1
        return f"{p}_{self.lab}"
    def stamp(self, k):
        if self.stamps:
            self.a(f"s_memrealtime s[{S_ST+2*k}:{S_ST+2*k+1}]")
    def stamp_init(self, n):
        if self.stamps:
            for k in range(n):
                self.a(f"s_mov_b64 s[{S_ST+2*k}:{S_ST+2*k+1}], 0")
    def stamp_dump(self, n, slot):
        if not self.stamps: return
        a = self.a
        a("s_waitcnt lgkmcnt(0)\ns_mov_b64 exec, 1")
        a(f"s_lshl_b32 s{S_T0}, s2, 9\ns_add_u32 s{S_T0}, s{S_T0}, {STAMP + slot*8}\nv_mov_b32 v2, 0")
        for k in range(n):
            a(f"v_mov_b32 v4, s{S_ST+2*k}\nv_mov_b32 v5, s{S_ST+2*k+1}")
            a(f"buffer_store_dwordx2 v[4:5], v2, s[{SRD_WS}:{SRD_WS+3}], s{S_T0} offen offset:{8*k}")
            a("s_waitcnt vmcnt(0)")
        a("s_mov_b64 exec, -1")
    def bound(self):
        self.a(f"s_add_u32 s{S_CNT}, s{S_CNT}, 1\ns_cmp_lt_u32 s{S_CNT}, {LIMIT}\ns_cbranch_scc0 L_done")
    def lds_wait1(self, off, val, vs, vt, sleep=0):
        l, d = self.L("W"), self.L("D")
        self.a(f"""
{l}:
ds_read_b32 v{vt}, v{vs} offset:{off}
s_waitcnt lgkmcnt(0)
v_readfirstlane_b32 s{S_T0}, v{vt}
s_cmp_ge_u32 s{S_T0}, {val}
s_cbranch_scc1 {d}""")
        self.bound()
        if sleep: self.a(f"s_sleep {sleep}")
        self.a(f"s_branch {l}\n{d}:")
    def lds_wait4(self, off, val, vs, vt, extra="", sleep=0):
        l, d = self.L("W"), self.L("D")
        self.a(f"{l}:\nds_read_b128 v[{vt}:{vt+3}], v{vs} offset:{off}")
        if extra: self.a(extra)
        self.a(f"""
s_waitcnt lgkmcnt(0)
v_min_u32 v{vt}, v{vt}, v{vt+1}
v_min3_u32 v{vt}, v{vt}, v{vt+2}, v{vt+3}
v_readfirstlane_b32 s{S_T0}, v{vt}
s_cmp_ge_u32 s{S_T0}, {val}
s_cbranch_scc1 {d}""")
        self.bound()
        if sleep: self.a(f"s_sleep {sleep}")
        self.a(f"s_branch {l}\n{d}:")
    def lds_set(self, off, val, vaddr, vt):
        self.a(f"v_mov_b32 v{vt}, {val}\nds_write_b32 v{vaddr}, v{vt} offset:{off}")
    def chk_sentinel(self, regs, vt):
        a = self.a
        regs = list(regs)
        a(f"v_max3_u32 v{vt}, v{regs[0]}, v{regs[1]}, v{regs[2]}" if len(regs) >= 3 else f"v_max_u32 v{vt}, v{regs[0]}, v{regs[1]}")
        rest = regs[3:] if len(regs) >= 3 else []
        while rest:
            if len(rest) >= 2:
                a(f"v_max3_u32 v{vt}, v{vt}, v{rest[0]}, v{rest[1]}"); rest = rest[2:]
            else:
                a(f"v_max_u32 v{vt}, v{vt}, v{rest[0]}"); rest = rest[1:]
        a(f"v_cmp_eq_u32 vcc, -1, v{vt}")
    def store_l(self, instr):
        if not self.lmode:
            for i in instr: self.a(i + " sc1")
            return
        l1, l2 = self.L("SL"), self.L("SE")
        self.a(f"s_cmp_eq_u32 s{S_MODE}, 1\ns_cbranch_scc1 {l1}")
        for i in instr: self.a(i + " sc1")
        self.a(f"s_branch {l2}\n{l1}:")
        for i in instr: self.a(i)
        self.a(f"{l2}:")
    def bf16r(self, d, s):
        self.a(f"v_cvt_pk_bf16_f32 v{d}, v{s}, v{s}\nv_and_b32 v{d}, 0xffff0000, v{d}")
    def allred(self, op, v, t, steps):
        a = self.a
        for s in steps:
            if s == 'q1': a(f"{op}_dpp v{v}, v{v}, v{v} quad_perm:[1,0,3,2] row_mask:0xf bank_mask:0xf")
            elif s == 'q2': a(f"{op}_dpp v{v}, v{v}, v{v} quad_perm:[2,3,0,1] row_mask:0xf bank_mask:0xf")
            elif s in (4, 8): a(f"{op}_dpp v{v}, v{v}, v{v} row_ror:{s} row_mask:0xf bank_mask:0xf")
            elif s == 16: a(f"v_mov_b32 v{t}, v{v}\nv_permlane16_swap_b32 v{v}, v{t}\n{op} v{v}, v{v}, v{t}")
            elif s == 32: a(f"v_mov_b32 v{t}, v{v}\nv_permlane32_swap_b32 v{v}, v{t}\n{op} v{v}, v{v}, v{t}")
    def allred2(self, op, v1, v2, t1, t2, steps):
        a = self.a
        for s in steps:
            for v, t in ((v1, t1), (v2, t2)):
                if s == 'q1': a(f"{op}_dpp v{v}, v{v}, v{v} quad_perm:[1,0,3,2] row_mask:0xf bank_mask:0xf")
                elif s == 'q2': a(f"{op}_dpp v{v}, v{v}, v{v} quad_perm:[2,3,0,1] row_mask:0xf bank_mask:0xf")
                elif s in (4, 8): a(f"{op}_dpp v{v}, v{v}, v{v} row_ror:{s} row_mask:0xf bank_mask:0xf")
            if s in (16, 32):
                a(f"v_mov_b32 v{t1}, v{v1}\nv_mov_b32 v{t2}, v{v2}")
                a(f"v_permlane{s}_swap_b32 v{v1}, v{t1}\nv_permlane{s}_swap_b32 v{v2}, v{t2}")
                a(f"{op} v{v1}, v{v1}, v{t1}\n{op} v{v2}, v{v2}, v{t2}")
    def ln_stats(self, s1, s2, vm, vr, t):
        a = self.a
        a(f"""
v_mul_f32 v{s1}, 0x3b000000, v{s1}
v_mul_f32 v{s2}, 0x3b000000, v{s2}
v_fma_f32 v{s2}, -v{s1}, v{s1}, v{s2}
v_max_f32 v{s2}, 0, v{s2}
""")
        self.bf16r(vm, s1)
        self.bf16r(t, s2)
        a(f"v_add_f32 v{t}, 0x{f2u(1e-5):08x}, v{t}")
        self.bf16r(t, t)
        a(f"v_sqrt_f32 v{t}, v{t}")
        self.bf16r(t, t)
        a(f"v_rcp_f32 v{vr}, v{t}")
    def ln_norm_pair(self, dst, lo, hi, vm, vr):
        self.a(f"""
v_sub_f32 v{lo}, v{lo}, v{vm}
v_sub_f32 v{hi}, v{hi}, v{vm}
v_cvt_pk_bf16_f32 v{hi}, v{lo}, v{hi}
v_lshlrev_b32 v{lo}, 16, v{hi}
v_and_b32 v{hi}, 0xffff0000, v{hi}
v_mul_f32 v{lo}, v{lo}, v{vr}
v_mul_f32 v{hi}, v{hi}, v{vr}
v_cvt_pk_bf16_f32 v{dst}, v{lo}, v{hi}
""")

    def prologue(self):
        a = self.a
        K = NAME + "_kernel"
        a(header([(None, 256, 384, LDS_BYTES)]))
        a(kstart(K))
        a(f"""
s_cmp_ge_u32 s2, 256
s_cbranch_scc1 L_done
s_load_dwordx16 s[8:23], s[0:1], 0
s_load_dwordx8 s[24:31], s[0:1], 64
s_load_dwordx2 s[32:33], s[0:1], 96
v_lshrrev_b32 v1, 6, v0
v_and_b32 v0, 63, v0
v_readfirstlane_b32 s{S_W}, v1
s_and_b32 s{S_X}, s2, 7
s_lshr_b32 s{S_J}, s2, 3
s_mov_b32 s{S_CNT}, 0
s_mov_b32 s{S_MODE}, 0
""")
        self.stamp_init(15)
        self.stamp(0)
        if self.prefetch:
            a(f"""
s_cmp_lg_u32 s{S_W}, 4
s_cbranch_scc1 L_nopf
s_getpc_b64 s[{S_EX}:{S_EX+1}]
v_lshlrev_b32 v2, 7, v0
""")
            a(";PREFETCH")
            a("L_nopf:")
        a(f"""
v_mov_b32 v1, {SCR}
v_lshl_add_u32 v2, v0, 2, v1
v_mov_b32 v3, 0
s_cmp_lg_u32 s{S_W}, 0
s_cbranch_scc1 L_noinit
ds_write_b32 v2, v3
L_noinit:
s_lshl_b32 s{S_H}, s{S_X}, 2
s_lshr_b32 s{S_T0}, s{S_J}, 3
s_add_u32 s{S_H}, s{S_H}, s{S_T0}
s_and_b32 s{S_I}, s{S_J}, 7
s_mov_b32 s{S_M0}, 0x000f000f
s_mov_b32 s{S_M0+1}, 0x000f000f
s_mov_b32 s{S_M1}, 0x00f000f0
s_mov_b32 s{S_M1+1}, 0x00f000f0
s_mov_b32 s{S_M2}, 0x0f000f00
s_mov_b32 s{S_M2+1}, 0x0f000f00
s_mov_b32 s{S_M3}, 0xf000f000
s_mov_b32 s{S_M3+1}, 0xf000f000
s_waitcnt lgkmcnt(0)
""")
        a(srd(SRD_WS, P['ws'], SIZES['ws']))
        a(f"""
s_cmp_eq_u32 s{S_W}, 5
s_cbranch_scc1 L_loader
s_barrier
s_cmp_eq_u32 s{S_W}, 4
s_cbranch_scc1 L_aux
""")

    def loader(self):
        a = self.a
        N = self.nfront
        a("L_loader:")
        a("s_setprio 2")
        a(srd(SRD_A, P['wq'], SIZES['wq']))
        a(srd(SRD_B, P['wuk'], SIZES['wuk']))
        a(srd(SRD_C, P['ckv'], SIZES['ckv']))
        a(f"""
v_lshrrev_b32 v4, 3, v0
v_and_b32 v5, 7, v0
v_lshrrev_b32 v6, 4, v0
v_lshlrev_b32 v7, 1, v6
v_xor_b32 v5, v5, v7
v_lshlrev_b32 v5, 4, v5
v_and_b32 v7, 3, v4
v_lshrrev_b32 v8, 5, v0
v_lshl_add_u32 v7, v8, 3, v7
v_lshl_add_u32 v10, v7, 13, v5
v_add_u32 v11, {16*8192}, v10
v_add_u32 v12, {4*8192}, v10
v_add_u32 v13, {20*8192}, v10
s_lshr_b32 s{S_A}, s{S_I}, 1
s_lshl_b32 s{S_A}, s{S_A}, 20
s_lshl_b32 s{S_B}, s{S_H}, 8
s_add_u32 s{S_A}, s{S_A}, s{S_B}
s_and_b32 s{S_C}, s{S_I}, 1
s_lshl_b32 s{S_C}, s{S_C}, 7
s_add_u32 s{S_A}, s{S_A}, s{S_C}
s_mov_b32 m0, {L_WQ}
""")
        for blk in range(4):
            for sub in range(4):
                a(f"buffer_load_dwordx4 v{10+sub}, s[{SRD_A}:{SRD_A+3}], s{S_A} offen nt lds")
                a("s_add_u32 m0, m0, 1024")
            a(f"s_add_u32 s{S_A}, s{S_A}, {32*8192}")
        a("s_barrier")
        issued = 16
        marks = [16, 32, 96]
        def after_issue():
            nonlocal issued
            issued += 1
            a(f"s_waitcnt vmcnt({N})")
            if issued - N in marks:
                self.lds_set(F_LD, issued - N, 1, 3)
                self.stamp(1 + marks.index(issued - N))
        a(f"""
v_and_b32 v14, 15, v0
v_xor_b32 v14, v14, v6
v_lshlrev_b32 v14, 4, v14
v_lshl_add_u32 v14, v6, 13, v14
v_xor_b32 v15, 64, v14
v_xor_b32 v16, 128, v14
v_xor_b32 v17, 192, v14
s_lshl_b32 s{S_A}, s{S_I}, 19
s_add_u32 s{S_A}, s{S_A}, s{S_B}
v_lshlrev_b32 v18, 4, v0
""")
        for r in range(16):
            f = ((r & 3) << 2) | ((r >> 2) & 3)
            a(f"v_xor_b32 v{20+r}, {f*16}, v18")
            if r: a(f"v_add_u32 v{20+r}, {r*1024}, v{20+r}")
        for q in range(16):
            a(f"buffer_load_dwordx4 v{14+((q>>1)&3)}, s[{SRD_B}:{SRD_B+3}], s{S_A} offen nt lds")
            a("s_add_u32 m0, m0, 1024")
            a(f"s_add_u32 s{S_A}, s{S_A}, {4*8192}")
            after_issue()
        a(f"""
s_lshl_b32 s{S_A}, s{S_X}, 5
s_add_u32 s{S_A}, s{S_A}, s{S_J}
s_lshl_b32 s{S_A}, s{S_A}, 16
s_mov_b32 m0, {L_CKV}
""")
        for blk in range(4):
            for r in range(16):
                a(f"buffer_load_dwordx4 v{20+r}, s[{SRD_C}:{SRD_C+3}], s{S_A} offen nt lds")
                a("s_add_u32 m0, m0, 1024")
                after_issue()
            a(f"s_add_u32 s{S_A}, s{S_A}, 16384")
        a("s_waitcnt vmcnt(0)")
        self.lds_set(F_LD, 96, 1, 3)
        self.stamp(3)
        if self.stop <= 4:
            self.stamp_dump(6, 24)
            a("s_endpgm")
            return
        NR = self.nrole
        a(f"""
s_cmp_lt_u32 s{S_J}, 16
s_cbranch_scc1 L_ld_p4
s_cmp_lt_u32 s{S_J}, 24
s_cbranch_scc1 L_ld_p5
s_cmp_eq_u32 s{S_X}, 7
s_cbranch_scc1 L_ld_fin
""")
        a(srd(SRD_A, P['wg'], SIZES['wg']))
        a(srd(SRD_B, P['wu'], SIZES['wu']))
        a(srd(SRD_C, P['wd'], SIZES['wd']))
        a(f"""
s_lshl_b32 s{S_B}, s{S_X}, 3
s_add_u32 s{S_B}, s{S_B}, s{S_I}        ; fs
v_lshrrev_b32 v7, 2, v0
v_and_b32 v7, 3, v7
v_lshl_add_u32 v7, v6, 3, v7
s_movk_i32 s{S_C}, 3584
v_mul_lo_u32 v7, v7, s{S_C}
v_and_b32 v8, 1, v6
v_lshlrev_b32 v8, 1, v8
v_and_b32 v9, 3, v0
v_xor_b32 v8, v8, v9
v_lshl_add_u32 v10, v8, 4, v7
v_add_u32 v11, {4*3584}, v10
s_lshl_b32 s{S_A}, s{S_B}, 6
s_mov_b32 m0, {L_ROLE}
s_mov_b32 s{S_D}, 0
L_ld_g:
buffer_load_dwordx4 v10, s[{SRD_A}:{SRD_A+3}], s{S_A} offen nt lds
s_add_u32 m0, m0, 1024
s_waitcnt vmcnt({NR})
buffer_load_dwordx4 v11, s[{SRD_A}:{SRD_A+3}], s{S_A} offen nt lds
s_add_u32 m0, m0, 1024
s_add_u32 s{S_A}, s{S_A}, {32*3584}
s_add_u32 s{S_D}, s{S_D}, 1
s_waitcnt vmcnt({NR})
s_cmp_lt_u32 s{S_D}, 16
s_cbranch_scc1 L_ld_g
""")
        self.lds_wait4(F_CKVFREE, 1, 1, 40)
        a(f"""
s_lshl_b32 s{S_A}, s{S_B}, 6
s_mov_b32 m0, {L_CKV}
s_mov_b32 s{S_D}, 0
L_ld_u:
buffer_load_dwordx4 v10, s[{SRD_B}:{SRD_B+3}], s{S_A} offen nt lds
s_add_u32 m0, m0, 1024
s_waitcnt vmcnt({NR})
buffer_load_dwordx4 v11, s[{SRD_B}:{SRD_B+3}], s{S_A} offen nt lds
s_add_u32 m0, m0, 1024
s_add_u32 s{S_A}, s{S_A}, {32*3584}
s_add_u32 s{S_D}, s{S_D}, 1
s_waitcnt vmcnt({NR})
s_cmp_lt_u32 s{S_D}, 16
s_cbranch_scc1 L_ld_u
s_lshl_b32 s{S_A}, s{S_B}, 15
""")
        for k in range(8):
            a(f"v_xor_b32 v{20+k}, {k*32}, v18")
        for slot in range(32):
            e, kg, rr = slot >> 4, (slot >> 2) & 3, slot & 3
            row = 8 * kg + 4 * e + rr
            a(f"s_add_u32 s{S_C}, s{S_A}, {row*1024}")
            a(f"buffer_load_dwordx4 v{20+(slot&7)}, s[{SRD_C}:{SRD_C+3}], s{S_C} offen nt lds")
            a("s_add_u32 m0, m0, 1024")
            a(f"s_waitcnt vmcnt({NR})")
        a("s_branch L_ld_fin")
        a("L_ld_p4:")
        a(srd(SRD_A, P['wuv'], SIZES['wuv']))
        a(f"""
v_lshl_add_u32 v10, v4, 13, v5
v_add_u32 v11, {16*8192}, v10
v_add_u32 v12, {8*8192}, v10
v_add_u32 v13, {24*8192}, v10
s_lshr_b32 s{S_A}, s{S_J}, 2
s_lshl_b32 s{S_B}, s{S_X}, 2
s_add_u32 s{S_A}, s{S_A}, s{S_B}
s_lshl_b32 s{S_A}, s{S_A}, 8          ; h*256
s_and_b32 s{S_B}, s{S_J}, 1
s_lshl_b32 s{S_B}, s{S_B}, 7
s_add_u32 s{S_A}, s{S_A}, s{S_B}
s_lshr_b32 s{S_B}, s{S_J}, 1
s_and_b32 s{S_B}, s{S_B}, 1
s_lshl_b32 s{S_B}, s{S_B}, 21
s_add_u32 s{S_A}, s{S_A}, s{S_B}
s_mov_b32 m0, {L_ROLE}
s_mov_b32 s{S_D}, 0
L_ld_p4l:
""")
        for sub in range(4):
            a(f"buffer_load_dwordx4 v{10+sub}, s[{SRD_A}:{SRD_A+3}], s{S_A} offen nt lds")
            a("s_add_u32 m0, m0, 1024")
            a(f"s_waitcnt vmcnt({NR})")
        a(f"""
s_add_u32 s{S_A}, s{S_A}, {32*8192}
s_add_u32 s{S_D}, s{S_D}, 1
s_cmp_lt_u32 s{S_D}, 8
s_cbranch_scc1 L_ld_p4l
s_branch L_ld_fin
""")
        a("L_ld_p5:")
        a(srd(SRD_A, P['wo'], SIZES['wo']))
        a(f"""
v_lshl_add_u32 v10, v7, 10, v5
v_add_u32 v11, {16*1024}, v10
v_add_u32 v12, {4*1024}, v10
v_add_u32 v13, {20*1024}, v10
s_lshl_b32 s{S_A}, s{S_X}, 19
s_lshl_b32 s{S_B}, s{S_I}, 7
s_add_u32 s{S_A}, s{S_A}, s{S_B}
s_mov_b32 m0, {L_ROLE}
s_mov_b32 s{S_D}, 0
L_ld_p5l:
""")
        for sub in range(4):
            a(f"buffer_load_dwordx4 v{10+sub}, s[{SRD_A}:{SRD_A+3}], s{S_A} offen nt lds")
            a("s_add_u32 m0, m0, 1024")
            a(f"s_waitcnt vmcnt({NR})")
        a(f"""
s_add_u32 s{S_A}, s{S_A}, {32*1024}
s_add_u32 s{S_D}, s{S_D}, 1
s_cmp_lg_u32 s{S_D}, 12
s_cbranch_scc1 L_ld_p5n
""")
        self.lds_wait4(F_CKVFREE, 1, 1, 40)
        a(f"""
s_mov_b32 m0, {L_CKV}
L_ld_p5n:
s_cmp_lt_u32 s{S_D}, 16
s_cbranch_scc1 L_ld_p5l
L_ld_fin:
s_waitcnt vmcnt(0)
""")
        self.lds_set(F_LD, 200, 1, 3)
        self.stamp(4)
        a("s_waitcnt lgkmcnt(0)")
        self.stamp_dump(6, 24)
        a("s_endpgm")

    def aux(self):
        a = self.a
        a("L_aux:")
        a(f"""
v_mov_b32 v2, 0
buffer_load_dword v4, v2, s[{SRD_WS}:{SRD_WS+3}], 0 offen sc1
v_mov_b32 v8, -1
v_mov_b32 v9, -1
v_mov_b32 v10, -1
v_mov_b32 v11, -1
v_lshlrev_b32 v5, 4, v0
s_lshl_b32 s{S_A}, s2, 12
s_add_u32 s{S_A}, s{S_A}, {CLR}
buffer_store_dwordx4 v[8:11], v5, s[{SRD_WS}:{SRD_WS+3}], s{S_A} offen sc1
buffer_store_dwordx4 v[8:11], v5, s[{SRD_WS}:{SRD_WS+3}], s{S_A} offen offset:1024 sc1
buffer_store_dwordx4 v[8:11], v5, s[{SRD_WS}:{SRD_WS+3}], s{S_A} offen offset:2048 sc1
buffer_store_dwordx4 v[8:11], v5, s[{SRD_WS}:{SRD_WS+3}], s{S_A} offen offset:3072 sc1
v_and_b32 v6, 3, v0
v_lshlrev_b32 v6, 15, v6
v_lshrrev_b32 v7, 2, v0
v_and_b32 v7, 3, v7
v_lshl_add_u32 v6, v7, 6, v6
v_lshrrev_b32 v12, 4, v0
v_lshl_add_u32 v6, v12, 4, v6
s_lshl_b32 s{S_B}, s{S_H}, 10
s_lshl_b32 s{S_C}, s{S_I}, 7
s_add_u32 s{S_B}, s{S_B}, s{S_C}
s_add_u32 s{S_B}, s{S_B}, {H2}
s_or_b64 s[{S_EX}:{S_EX+1}], s[{S_M0}:{S_M0+1}], s[{S_M1}:{S_M1+1}]
s_mov_b64 exec, s[{S_EX}:{S_EX+1}]
buffer_store_dwordx4 v[8:11], v6, s[{SRD_WS}:{SRD_WS+3}], s{S_B} offen sc1
s_mov_b64 exec, -1
s_getreg_b32 s{S_G}, hwreg(HW_REG_XCC_ID)
v_and_b32 v13, 3, v0
v_lshlrev_b32 v13, 4, v13
v_lshl_add_u32 v13, v7, 11, v13
v_lshl_add_u32 v13, v12, 7, v13
s_lshl_b32 s{S_C}, s{S_H}, 13
s_add_u32 s{S_C}, s{S_C}, {H1}
v_and_b32 v14, 3, v0
v_lshl_add_u32 v15, v7, 3, v14
v_lshlrev_b32 v15, 8, v15
v_xor_b32 v14, v14, v12
v_lshl_add_u32 v14, v7, 2, v14
v_lshl_add_u32 v16, v14, 4, v15
v_add_u32 v16, {L_WUK}, v16
v_xor_b32 v17, 64, v16
v_xor_b32 v18, 128, v16
v_xor_b32 v19, 192, v16
s_waitcnt vmcnt(0)
v_readfirstlane_b32 s{S_TAG}, v4
s_add_u32 s{S_TAG}, s{S_TAG}, 1
s_mul_i32 s{S_TAG}, s{S_TAG}, 0x9e3779b1
v_mov_b32 v8, s{S_TAG}
v_mov_b32 v9, s{S_G}
s_lshl_b32 s{S_A}, s2, 3
s_add_u32 s{S_A}, s{S_A}, {READY}
s_mov_b64 exec, 1
buffer_store_dwordx2 v[8:9], v2, s[{SRD_WS}:{SRD_WS+3}], s{S_A} offen sc1
s_mov_b64 exec, -1
""")
        self.stamp(1)
        self.lds_wait1(F_LD, 32, 1, 3, sleep=1)
        for tau in range(2):
            for sig in range(2):
                for s in range(4):
                    r = 64 + ((tau * 2 + sig) * 4 + s) * 4
                    a(f"ds_read_b128 v[{r}:{r+3}], v{16+s} offset:{tau*8192+sig*1024}")
        self.stamp(2)
        lp = self.L("PH1")
        a(f"v_lshlrev_b32 v20, 5, v0\ns_mov_b32 s{S_D}, {READY}")
        a(f"{lp}:")
        for s in range(4):
            for e in range(2):
                r = 24 + (s * 2 + e) * 4
                a(f"buffer_load_dwordx4 v[{r}:{r+3}], v13, s[{SRD_WS}:{SRD_WS+3}], s{S_C} offen offset:{s*512+e*64} sc1")
        a(f"buffer_load_dwordx4 v[56:59], v20, s[{SRD_WS}:{SRD_WS+3}], s{S_D} offen sc1")
        a(f"buffer_load_dwordx4 v[60:63], v20, s[{SRD_WS}:{SRD_WS+3}], s{S_D} offen offset:16 sc1")
        a("s_waitcnt vmcnt(0)")
        a(f"v_xor_b32 v21, s{S_TAG}, v25")
        tags = [24 + 2 * k + 1 for k in range(1, 16)] + [56, 58, 60, 62]
        for t in tags:
            a(f"v_bitop3_b32 v21, v21, v{t}, v8 bitop3:0xf6")
        a("v_cmp_ne_u32 vcc, 0, v21")
        dn = self.L("PD")
        a(f"s_cbranch_vccz {dn}")
        self.bound()
        a(f"s_sleep 2\ns_branch {lp}\n{dn}:")
        self.stamp(3)
        for s in range(4):
            b = 24 + 8 * s
            a(f"v_mov_b32 v{b+1}, v{b+2}\nv_mov_b32 v{b+2}, v{b+4}\nv_mov_b32 v{b+3}, v{b+6}")
        a("s_waitcnt lgkmcnt(0)")
        for s in range(4):
            for t in range(4):
                r = 64 + (t * 4 + s) * 4
                d = 128 + 4 * t
                c = "0" if s == 0 else f"v[{d}:{d+3}]"
                a(f"v_mfma_f32_16x16x32_bf16 v[{d}:{d+3}], v[{r}:{r+3}], v[{24+8*s}:{27+8*s}], {c}")
        if self.lmode:
            a(f"""
v_and_b32 v22, 1, v0
v_lshlrev_b32 v22, 2, v22
v_mov_b32 v23, 0
""")
            for k in range(4):
                a(f"""
v_add_u32 v21, {k}, v22
v_cmp_eq_u32 vcc, s{S_X}, v21
v_xor_b32 v21, v9, v{57+2*k}
v_cndmask_b32 v21, 0, v21, vcc
v_or_b32 v23, v23, v21
""")
            a(f"""
v_cmp_ne_u32 vcc, 0, v23
s_cmp_eq_u64 vcc, 0
s_cselect_b32 s{S_MODE}, 1, 0
""")
        for k in range(16):
            a(f"v_add_f32_dpp v{128+k}, v{128+k}, v{128+k} row_ror:4 row_mask:0xf bank_mask:0xf")
        for k in range(16):
            a(f"v_add_f32_dpp v{128+k}, v{128+k}, v{128+k} row_ror:8 row_mask:0xf bank_mask:0xf")
        for k in range(8):
            a(f"v_cvt_pk_bf16_f32 v{144+k}, v{128+2*k}, v{129+2*k}")
        for k in range(4):
            a(f"v_cndmask_b32 v{144+k}, v{144+k}, v{148+k}, s[{S_M1}:{S_M1+1}]")
            a(f"v_min_u32 v{144+k}, -2, v{144+k}")
        a(f"""
s_mov_b64 exec, s[{S_EX}:{S_EX+1}]
buffer_store_dwordx4 v[144:147], v6, s[{SRD_WS}:{SRD_WS+3}], s{S_B} offen sc1
s_mov_b64 exec, -1
""")
        self.stamp(4)
        a(f"s_waitcnt vmcnt(0)\ns_add_u32 s{S_T0}, s{S_MODE}, 1\nv_mov_b32 v3, s{S_T0}\nds_write_b32 v1, v3 offset:{F_GOQ}")
        self.stamp(5)
        a("s_waitcnt lgkmcnt(0)")
        self.stamp_dump(6, 16)
        a("s_endpgm")

    def finish_compute(self):
        a = self.a
        if self.stamps:
            l = self.L("NS")
            a(f"s_cmp_lg_u32 s{S_W}, 0\ns_cbranch_scc1 {l}")
            self.stamp_dump(15, 0)
            a(f"{l}:")
        a("s_endpgm")

    def p1(self):
        a = self.a
        a(srd(SRD_A, P['x'], SIZES['x']))
        a(f"""
v_and_b32 v2, 3, v0
v_lshrrev_b32 v7, 2, v0
v_and_b32 v3, 3, v7
v_lshrrev_b32 v4, 4, v0
v_and_b32 v5, 15, v0
s_lshl_b32 s{S_T0}, s{S_W}, 2
v_add_u32 v6, s{S_T0}, v1
v_lshlrev_b32 v32, 10, v2
v_lshl_add_u32 v33, v7, 6, v32
buffer_load_dwordx4 v[8:11], v33, s[{SRD_A}:{SRD_A+3}], 0 offen
buffer_load_dwordx4 v[12:15], v33, s[{SRD_A}:{SRD_A+3}], 0 offen offset:16
buffer_load_dwordx4 v[16:19], v33, s[{SRD_A}:{SRD_A+3}], 0 offen offset:32
buffer_load_dwordx4 v[20:23], v33, s[{SRD_A}:{SRD_A+3}], 0 offen offset:48
v_lshl_add_u32 v34, v3, 6, v32
v_lshl_add_u32 v34, v4, 4, v34
s_lshr_b32 s{S_A}, s{S_I}, 1
s_lshl_b32 s{S_B}, s{S_A}, 8
buffer_load_dwordx4 v[24:27], v34, s[{SRD_A}:{SRD_A+3}], s{S_B} offen
v_mov_b32 v35, 0
buffer_load_dword v28, v35, s[{SRD_WS}:{SRD_WS+3}], 0 offen sc1
v_lshrrev_b32 v36, 3, v0
v_and_b32 v36, 3, v36
v_xor_b32 v36, s{S_W}, v36
v_lshlrev_b32 v36, 5, v36
v_lshl_add_u32 v36, v7, 7, v36
v_lshl_add_u32 v36, v2, 3, v36
v_add_u32 v36, {L_WQ}, v36
v_lshlrev_b32 v37, 4, v2
v_lshl_add_u32 v37, v4, 6, v37
s_lshl_b32 s{S_B}, s{S_H}, 13
s_lshl_b32 s{S_C}, s{S_A}, 11
s_add_u32 s{S_B}, s{S_B}, s{S_C}
s_and_b32 s{S_C}, s{S_I}, 1
s_lshl_b32 s{S_C}, s{S_C}, 10
s_add_u32 s{S_B}, s{S_B}, s{S_C}
s_lshl_b32 s{S_C}, s{S_W}, 8
s_add_u32 s{S_B}, s{S_B}, s{S_C}
s_add_u32 s{S_B}, s{S_B}, {H1}
s_mov_b32 s{S_D}, 0x3f803f80
v_mov_b32 v30, 0
v_mov_b32 v31, 0
s_waitcnt vmcnt(2)
""")
        for k in range(16):
            a(f"v_dot2_f32_bf16 v30, v{8+k}, s{S_D}, v30")
            a(f"v_dot2_f32_bf16 v31, v{8+k}, v{8+k}, v31")
        self.allred2("v_add_f32", 30, 31, 32, 33, [4, 8, 16, 32])
        self.ln_stats(30, 31, 32, 33, 34)
        a("s_waitcnt vmcnt(0)")
        for k in range(4):
            a(f"v_lshlrev_b32 v8, 16, v{24+k}\nv_and_b32 v9, 0xffff0000, v{24+k}")
            self.ln_norm_pair(24 + k, 8, 9, 32, 33)
        for s in range(4):
            m = (S_M0, S_M1, S_M2, S_M3)[s]
            for k in range(4):
                a(f"v_cndmask_b32 v{8+4*s+k}, 0, v{24+k}, s[{m}:{m+1}]")
        a(f"""
v_readfirstlane_b32 s{S_TAG}, v28
s_add_u32 s{S_G}, s{S_TAG}, 1
s_mul_i32 s{S_TAG}, s{S_G}, 0x9e3779b1
v_mov_b32 v61, s{S_TAG}
v_mov_b32 v63, s{S_TAG}
""")
        self.stamp(1)
        self.lds_wait1(F_LD, 16, 1, 30)
        for s in range(4):
            for e in range(2):
                r = 40 + 4 * s + 2 * e
                a(f"ds_read_b64_tr_b16 v[{r}:{r+1}], v36 offset:{s*4096+e*2048}")
        for s in range(4):
            a(f"s_waitcnt lgkmcnt({6-2*s})")
            c = "0" if s == 0 else "v[56:59]"
            a(f"v_mfma_f32_16x16x32_bf16 v[56:59], v[{40+4*s}:{43+4*s}], v[{8+4*s}:{11+4*s}], {c}")
        for st in (4, 8):
            for k in range(4):
                a(f"v_add_f32_dpp v{56+k}, v{56+k}, v{56+k} row_ror:{st} row_mask:0xf bank_mask:0xf")
        a(f"""
v_cvt_pk_bf16_f32 v60, v56, v57
v_cvt_pk_bf16_f32 v62, v58, v59
s_mov_b64 exec, s[{S_M0}:{S_M0+1}]
buffer_store_dwordx4 v[60:63], v37, s[{SRD_WS}:{SRD_WS+3}], s{S_B} offen sc1
s_mov_b64 exec, -1
""")
        self.stamp(2)

    def p3(self):
        a = self.a
        SA, PA, ACC = 64, 128, 192
        a(f"""
v_lshlrev_b32 v24, 2, v2
v_or_b32 v24, v24, v3
v_lshlrev_b32 v24, 4, v24
v_lshl_add_u32 v24, v4, 8, v24
v_lshl_add_u32 v24, v5, 10, v24
s_lshl_b32 s{S_T0}, s{S_W}, 14
v_add_u32 v24, s{S_T0}, v24
v_lshrrev_b32 v25, 5, v0
v_and_b32 v26, 1, v4
v_xor_b32 v26, v26, v25
v_lshlrev_b32 v26, 1, v26
v_lshrrev_b32 v27, 1, v2
v_or_b32 v26, v26, v27
v_lshl_or_b32 v26, v3, 2, v26
v_lshlrev_b32 v26, 4, v26
v_and_b32 v27, 1, v2
v_lshl_add_u32 v26, v27, 3, v26
v_lshl_add_u32 v27, v25, 3, v3
v_lshl_add_u32 v26, v27, 10, v26
s_lshl_b32 s{S_T0}, s{S_W}, 8
v_add_u32 v26, s{S_T0}, v26
v_lshlrev_b32 v28, 4, v5
v_lshl_add_u32 v28, v4, 8, v28
v_lshl_add_u32 v28, v5, 10, v28
v_add_u32 v28, {L_QIMG}, v28
""")
        for s in range(16):
            a(f"v_xor_b32 v{8+s}, {s*16}, v28")
        a(f"""
v_lshlrev_b32 v7, 4, v0
s_and_b32 s{S_T0}, s{S_W}, 1
s_lshl_b32 s{S_T0}, s{S_T0}, 7
v_xor_b32 v30, s{S_T0}, v7
s_lshr_b32 s{S_A}, s{S_X}, 1
s_lshl_b32 s{S_A}, s{S_A}, 15
s_lshl_b32 s{S_B}, s{S_W}, 13
s_add_u32 s{S_A}, s{S_A}, s{S_B}
s_add_u32 s{S_A}, s{S_A}, {H2}
s_add_u32 s{S_B}, s{S_B}, {L_QIMG}
v_add_u32 v31, s{S_B}, v7
""")
        for i in range(8):
            a(f"v_xor_b32 v{32+i}, {i*16}, v30")
            if i: a(f"v_add_u32 v{32+i}, {i*1024}, v{32+i}")
        self.lds_wait1(F_LD, 96, 1, 40, sleep=1)
        self.stamp(3)
        for s in range(16):
            a(f"v_xor_b32 v40, {s*16}, v24")
            a(f"ds_read_b128 v[{SA+4*s}:{SA+4*s+3}], v40")
            if s % 8 == 7: a("s_waitcnt lgkmcnt(0)")
        for t in range(4):
            for e in range(2):
                a(f"v_xor_b32 v40, {(t<<6)|(e<<4)}, v26")
                for kap in range(4):
                    r = PA + (t * 4 + kap) * 4 + 2 * e
                    a(f"ds_read_b64_tr_b16 v[{r}:{r+1}], v40 offset:{kap*16384+e*4096}")
            a("s_waitcnt lgkmcnt(0)")
        self.lds_set(F_CKVFREE, 1, 6, 40)
        self.stamp(4)
        self.lds_wait1(F_GOQ, 1, 1, 40)
        a(f"s_sub_u32 s{S_MODE}, s{S_T0}, 1")
        self.stamp(5)
        lp, dn = self.L("PQ"), self.L("PD")
        a(f"{lp}:\ns_mov_b32 m0, s{S_B}")
        for i in range(8):
            a(f"buffer_load_dwordx4 v{32+i}, s[{SRD_WS}:{SRD_WS+3}], s{S_A} offen sc1 lds")
            if i < 7: a("s_add_u32 m0, m0, 1024")
        a("s_waitcnt vmcnt(0)")
        for i in range(8):
            a(f"ds_read_b128 v[{ACC+4*i}:{ACC+4*i+3}], v31 offset:{i*1024}")
        a("s_waitcnt lgkmcnt(0)")
        self.chk_sentinel(range(ACC, ACC + 32), 40)
        a(f"s_cbranch_vccz {dn}")
        self.bound()
        a(f"s_sleep 2\ns_branch {lp}\n{dn}:")
        self.lds_set(F_QOK, 1, 6, 40)
        self.stamp(6)
        self.lds_wait4(F_QOK, 1, 1, 40)
        NB = 14
        seq = [(s, T) for s in range(16) for T in range(2)]
        def rd(k):
            s, T = seq[k]
            r = ACC + 4 * (k % 16)
            a(f"ds_read_b128 v[{r}:{r+3}], v{8+s} offset:{T*16384}")
        for k in range(NB): rd(k)
        for k in range(32):
            s, T = seq[k]
            out = min(NB, 32 - k) - 1
            a(f"s_waitcnt lgkmcnt({out})")
            r = ACC + 4 * (k % 16)
            d = 44 + 4 * T
            c = "0" if s == 0 else f"v[{d}:{d+3}]"
            a(f"v_mfma_f32_16x16x32_bf16 v[{d}:{d+3}], v[{SA+4*s}:{SA+4*s+3}], v[{r}:{r+3}], {c}")
            if k + NB < 32: rd(k + NB)
        self.stamp(7)
        a(f"""
s_mov_b32 s{S_C}, 0x{f2u(SCALE_LOG2E):08x}
v_max3_f32 v52, v44, v45, v46
v_max3_f32 v53, v48, v49, v50
v_max_f32 v52, v52, v47
v_max_f32 v53, v53, v51
""")
        self.allred2("v_max_f32", 52, 53, 54, 55, [16, 32])
        a(f"""
s_mov_b32 s{S_EX}, 0xffff0000
s_mov_b32 s{S_EX+1}, 0xffff0000
v_cndmask_b32 v52, v52, v53, s[{S_EX}:{S_EX+1}]
v_mul_f32 v52, s{S_C}, v52
v_and_b32 v54, 31, v0
v_lshl_add_u32 v55, v54, 4, v6
ds_write_b32 v55, v52 offset:{O_MX}
""")
        self.lds_set(F_MXF, 1, 6, 53)
        a(f"""
v_lshl_add_u32 v55, v5, 4, v1
v_lshl_add_u32 v54, v54, 4, v1
""")
        self.lds_wait4(F_MXF, 1, 1, 40, extra=f"""ds_read_b128 v[56:59], v55 offset:{O_MX}
ds_read_b128 v[60:63], v55 offset:{O_MX+256}
ds_read_b128 v[8:11], v54 offset:{O_MX}""")
        a(f"""
v_max3_f32 v56, v56, v57, v58
v_max3_f32 v60, v60, v61, v62
v_max_f32 v56, v56, v59
v_max_f32 v60, v60, v63
""")
        for k in range(4):
            a(f"v_fma_f32 v{44+k}, v{44+k}, s{S_C}, -v56")
            a(f"v_fma_f32 v{48+k}, v{48+k}, s{S_C}, -v60")
        for k in range(8):
            a(f"v_exp_f32 v{44+k}, v{44+k}")
        a(f"""
v_lshrrev_b32 v57, 5, v0
v_lshlrev_b32 v57, 9, v57
v_and_b32 v58, 1, v4
v_lshl_add_u32 v57, v58, 3, v57
v_add_u32 v57, v57, v55
s_lshl_b32 s{S_T0}, s{S_W}, 10
v_add_u32 v57, s{S_T0}, v57
v_cvt_pk_bf16_f32 v44, v44, v45
v_cvt_pk_bf16_f32 v45, v46, v47
v_cvt_pk_bf16_f32 v46, v48, v49
v_cvt_pk_bf16_f32 v47, v50, v51
ds_write_b64 v57, v[44:45] offset:{O_PX}
ds_write_b64 v57, v[46:47] offset:{O_PX+256}
""")
        self.lds_set(F_PF, 1, 6, 53)
        a(f"""
v_add_u32 v58, v7, v1
v_max3_f32 v8, v8, v9, v10
v_max_f32 v8, v8, v11
""")
        self.lds_wait4(F_PF, 1, 1, 40, extra="\n".join(f"ds_read_b128 v[{44+4*k}:{47+4*k}], v58 offset:{O_PX+k*1024}" for k in range(4)).replace("v[56:59]", "v[12:15]"))
        self.stamp(8)
        PB = [44, 48, 52, 12]
        a(f"""
s_lshl_b32 s{S_A}, s{S_X}, 5
s_add_u32 s{S_A}, s{S_A}, s{S_J}
s_lshl_b32 s{S_A}, s{S_A}, 15
s_lshl_b32 s{S_B}, s{S_W}, 13
s_add_u32 s{S_A}, s{S_A}, s{S_B}
s_add_u32 s{S_A}, s{S_A}, {OPART}
s_mov_b32 s{S_D}, 0x3f803f80
v_mov_b32 v9, 0
""")
        for t in range(4):
            d = ACC + 16 * t
            for kap in range(4):
                r = PA + (t * 4 + kap) * 4
                c = "0" if kap == 0 else f"v[{d}:{d+15}]"
                a(f"v_mfma_f32_32x32x16_bf16 v[{d}:{d+15}], v[{r}:{r+3}], v[{PB[kap]}:{PB[kap]+3}], {c}")
                if t == 0:
                    for k in range(4):
                        a(f"v_dot2_f32_bf16 v9, v{PB[kap]+k}, s{S_D}, v9")
            if t >= 1:
                self.pv_pack(t - 1, ACC)
        self.pv_pack(3, ACC)
        self.allred("v_add_f32", 9, 10, [32])
        a(f"""
v_min_u32 v8, -2, v8
v_min_u32 v9, -2, v9
s_lshl_b32 s{S_A}, s{S_X}, 15
s_add_u32 s{S_A}, s{S_A}, s{S_B}
s_lshl_b32 s{S_C}, s{S_J}, 8
s_add_u32 s{S_A}, s{S_A}, s{S_C}
s_add_u32 s{S_A}, s{S_A}, {STATS}
v_lshlrev_b32 v10, 3, v0
""")
        self.stamp(9)
        a("s_waitcnt vmcnt(0)\ns_mov_b32 exec_hi, 0")
        self.store_l([f"buffer_store_dwordx2 v[8:9], v10, s[{SRD_WS}:{SRD_WS+3}], s{S_A} offen"])
        a("s_mov_b64 exec, -1")
        self.stamp(10)

    def pv_pack(self, t, ACC):
        a = self.a
        d = ACC + 16 * t
        o = 64 + 8 * t
        for k in range(8):
            a(f"v_cvt_pk_bf16_f32 v{o+k}, v{d+2*k}, v{d+2*k+1}")
        st = []
        for u in range(2):
            off = t * 2048 + u * 1024
            if off < 4096:
                st.append(f"buffer_store_dwordx4 v[{o+4*u}:{o+4*u+3}], v7, s[{SRD_WS}:{SRD_WS+3}], s{S_A} offen offset:{off}")
            else:
                st.append(f"buffer_store_dwordx4 v[{o+4*u}:{o+4*u+3}], v7, s[{SRD_WS}:{SRD_WS+3}], s{S_E} offen offset:{off-4096}")
        if t == 2: a(f"s_add_u32 s{S_E}, s{S_A}, 4096")
        self.store_l(st)

    def pc(self):
        a = self.a
        a(f"""
s_and_b32 s{S_A}, s{S_J}, 3            ; o
s_lshr_b32 s{S_B}, s{S_J}, 2           ; cr
s_lshr_b32 s{S_C}, s{S_B}, 1           ; wsrc
s_lshl_b32 s{S_D}, s{S_X}, 15
s_lshl_b32 s{S_T0}, s{S_C}, 13
s_add_u32 s{S_D}, s{S_D}, s{S_T0}
s_lshl_b32 s{S_T1}, s{S_W}, 11
s_add_u32 s{S_D}, s{S_D}, s{S_T1}
s_lshl_b32 s{S_T1}, s{S_A}, 6
s_add_u32 s{S_D}, s{S_D}, s{S_T1}
s_add_u32 s{S_D}, s{S_D}, {STATS}
v_and_b32 v8, 7, v0
v_lshlrev_b32 v9, 3, v8
s_lshl_b32 s{S_E}, s{S_X}, 20
s_lshl_b32 s{S_T1}, s{S_W}, 18
s_add_u32 s{S_E}, s{S_E}, s{S_T1}
s_add_u32 s{S_E}, s{S_E}, s{S_T0}
s_and_b32 s{S_T1}, s{S_B}, 1
s_lshl_b32 s{S_T1}, s{S_T1}, 12
s_add_u32 s{S_E}, s{S_E}, s{S_T1}
s_lshl_b32 s{S_T1}, s{S_A}, 7
s_add_u32 s{S_E}, s{S_E}, s{S_T1}
s_add_u32 s{S_E}, s{S_E}, {OPART}
v_lshrrev_b32 v10, 3, v0
v_lshlrev_b32 v11, 9, v10
v_lshl_add_u32 v11, v8, 4, v11
s_waitcnt vmcnt(0)
""")
        lp, dn = self.L("PC"), self.L("PD")
        a(f"{lp}:")
        for i in range(8):
            a(f"buffer_load_dwordx2 v[{16+2*i}:{17+2*i}], v9, s[{SRD_WS}:{SRD_WS+3}], s{S_D} offen offset:{i*256} sc1")
        a("s_waitcnt vmcnt(0)")
        self.chk_sentinel(range(16, 32), 12)
        a(f"s_cbranch_vccz {dn}")
        self.bound()
        a(f"s_sleep 1\ns_branch {lp}\n{dn}:")
        for i in range(8):
            a(f"buffer_load_dwordx4 v[{64+4*i}:{67+4*i}], v11, s[{SRD_WS}:{SRD_WS+3}], s{S_E} offen sc1")
            if i < 7: a(f"s_add_u32 s{S_E}, s{S_E}, 32768")
        self.stamp(11)
        a("""
v_max3_f32 v32, v16, v18, v20
v_max3_f32 v32, v32, v22, v24
v_max3_f32 v32, v32, v26, v28
v_max_f32 v32, v32, v30
""")
        for i in range(8):
            a(f"v_sub_f32 v{16+2*i}, v{16+2*i}, v32")
        for i in range(8):
            a(f"v_exp_f32 v{16+2*i}, v{16+2*i}")
        a("v_mul_f32 v33, v16, v17")
        for i in range(1, 8):
            a(f"v_fmac_f32 v33, v{16+2*i}, v{17+2*i}")
        a(f"""
s_lshl_b32 s{S_T0}, s{S_W}, 6
v_add_u32 v34, v9, v1
v_add_u32 v35, s{S_T0}, v34
ds_write_b64 v35, v[32:33] offset:{O_CS}
""")
        for i in range(8):
            a(f"s_waitcnt vmcnt({7-i})")
            for k in range(4):
                r = 64 + 4 * i + k
                a(f"v_lshlrev_b32 v36, 16, v{r}\nv_and_b32 v37, 0xffff0000, v{r}")
                if i == 0:
                    a(f"v_mul_f32 v{40+2*k}, v36, v16\nv_mul_f32 v{41+2*k}, v37, v16")
                else:
                    a(f"v_fmac_f32 v{40+2*k}, v36, v{16+2*i}\nv_fmac_f32 v{41+2*k}, v37, v{16+2*i}")
        a(f"""
s_lshl_b32 s{S_T0}, s{S_W}, 11
s_add_u32 s{S_T0}, s{S_T0}, {L_CX}
v_add_u32 v36, s{S_T0}, v7
ds_write_b128 v36, v[40:43]
ds_write_b128 v36, v[44:47] offset:1024
""")
        self.lds_set(F_CXF, 1, 6, 37)
        skip = self.L("CS")
        a(f"s_cmp_lg_u32 s{S_W}, 0\ns_cbranch_scc1 {skip}")
        a(f"""
v_lshl_add_u32 v36, v8, 3, v10
v_lshlrev_b32 v36, 4, v36
v_add_u32 v36, {L_CX}, v36
v_lshl_add_u32 v37, v10, 3, v1
s_lshl_b32 s{S_D}, s{S_X}, 15
s_lshl_b32 s{S_T0}, s{S_A}, 13
s_add_u32 s{S_D}, s{S_D}, s{S_T0}
s_lshl_b32 s{S_T0}, s{S_B}, 7
s_add_u32 s{S_D}, s{S_D}, s{S_T0}
s_add_u32 s{S_D}, s{S_D}, {OC}
v_lshlrev_b32 v38, 10, v10
v_lshl_add_u32 v38, v8, 4, v38
s_lshl_b32 s{S_E}, s{S_X}, 12
s_lshl_b32 s{S_T1}, s{S_A}, 10
s_add_u32 s{S_E}, s{S_E}, s{S_T1}
s_add_u32 s{S_E}, s{S_E}, s{S_T0}
s_add_u32 s{S_E}, s{S_E}, {OCS}
v_lshlrev_b32 v39, 3, v10
""")
        ex = []
        for v in range(4):
            ex.append(f"ds_read_b64 v[{16+2*v}:{17+2*v}], v37 offset:{O_CS+64*v}")
            ex.append(f"ds_read_b128 v[{64+8*v}:{67+8*v}], v36 offset:{v*2048}")
            ex.append(f"ds_read_b128 v[{68+8*v}:{71+8*v}], v36 offset:{v*2048+1024}")
        self.lds_wait4(F_CXF, 1, 1, 12, extra="\n".join(ex))
        a("""
v_max3_f32 v32, v16, v18, v20
v_max_f32 v32, v32, v22
""")
        for v in range(4): a(f"v_sub_f32 v{16+2*v}, v{16+2*v}, v32")
        for v in range(4): a(f"v_exp_f32 v{16+2*v}, v{16+2*v}")
        a("v_mul_f32 v33, v16, v17")
        for v in range(1, 4): a(f"v_fmac_f32 v33, v{16+2*v}, v{17+2*v}")
        for k in range(8): a(f"v_mul_f32 v{64+k}, v{64+k}, v16")
        for v in range(1, 4):
            for k in range(8): a(f"v_fmac_f32 v{64+k}, v{64+8*v+k}, v{16+2*v}")
        for k in range(4):
            a(f"v_cvt_pk_bf16_f32 v{40+k}, v{64+2*k}, v{65+2*k}\nv_min_u32 v{40+k}, -2, v{40+k}")
        a(f"""
v_min_u32 v32, -2, v32
v_min_u32 v33, -2, v33
buffer_store_dwordx4 v[40:43], v38, s[{SRD_WS}:{SRD_WS+3}], s{S_D} offen sc1
buffer_store_dwordx2 v[32:33], v39, s[{SRD_WS}:{SRD_WS+3}], s{S_E} offen sc1
{skip}:
""")
        self.stamp(12)

    def tile128_addr(self, vd, base_expr_sgpr):
        self.a(f"""
v_lshrrev_b32 v{vd}, 3, v0
v_and_b32 v{vd}, 3, v{vd}
v_lshlrev_b32 v{vd}, 5, v{vd}
v_lshrrev_b32 v{vd+1}, 2, v0
v_lshl_add_u32 v{vd}, v{vd+1}, 7, v{vd}
v_lshl_add_u32 v{vd}, v2, 3, v{vd}
v_add_u32 v{vd}, s{base_expr_sgpr}, v{vd}
""")

    def role_reduce_write(self, D):
        a = self.a
        a(f"""
v_lshlrev_b32 v10, 7, v4
v_lshl_add_u32 v10, v5, 4, v10
s_lshl_b32 s{S_T0}, s{S_W}, 11
s_add_u32 s{S_T0}, s{S_T0}, {L_RX}
v_add_u32 v10, s{S_T0}, v10
s_mov_b32 s{S_EX}, 0x00ff00ff
s_mov_b32 s{S_EX+1}, 0x00ff00ff
s_mov_b64 exec, s[{S_EX}:{S_EX+1}]
""")
        for t in range(4):
            a(f"ds_write_b128 v10, v[{D+4*t}:{D+4*t+3}] offset:{t*512}")
        a("s_mov_b64 exec, -1")
        self.lds_set(F_RXF, 1, 6, 11)

    def p4(self):
        a = self.a
        a("L_p4:")
        a(f"""
s_lshr_b32 s{S_A}, s{S_J}, 2            ; hx
s_lshl_b32 s{S_H}, s{S_X}, 2
s_add_u32 s{S_H}, s{S_H}, s{S_A}
s_lshr_b32 s{S_B}, s{S_J}, 1
s_and_b32 s{S_B}, s{S_B}, 1             ; chalf
s_lshl_b32 s{S_T1}, s{S_W}, 13
s_add_u32 s{S_T1}, s{S_T1}, {L_ROLE}
""")
        self.tile128_addr(8, S_T1)
        a(f"""
v_and_b32 v12, 7, v0
v_lshlrev_b32 v13, 15, v12
v_lshl_add_u32 v13, v4, 4, v13
s_lshl_b32 s{S_C}, s{S_H}, 10
s_lshl_b32 s{S_T0}, s{S_B}, 9
s_add_u32 s{S_C}, s{S_C}, s{S_T0}
s_lshl_b32 s{S_T1}, s{S_W}, 7
s_add_u32 s{S_C}, s{S_C}, s{S_T1}
s_add_u32 s{S_C}, s{S_C}, {OC}
v_lshlrev_b32 v14, 13, v4
s_lshr_b32 s{S_D}, s{S_H}, 3
s_lshl_b32 s{S_D}, s{S_D}, 10
s_add_u32 s{S_D}, s{S_D}, s{S_T0}
s_and_b32 s{S_T1}, s{S_H}, 7
s_lshl_b32 s{S_T1}, s{S_T1}, 3
s_add_u32 s{S_D}, s{S_D}, s{S_T1}
s_add_u32 s{S_D}, s{S_D}, {OCS}
s_add_u32 s{S_E}, s{S_D}, 4096
""")
        self.lds_wait1(F_LD, 200, 1, 15, sleep=1)
        for t in range(4):
            a(f"v_xor_b32 v15, {t<<5}, v8")
            for s in range(2):
                for e in range(2):
                    r = 64 + (t * 2 + s) * 4 + 2 * e
                    a(f"ds_read_b64_tr_b16 v[{r}:{r+1}], v15 offset:{s*4096+e*2048}")
        lp, dn = self.L("P4"), self.L("PD")
        a(f"""
s_waitcnt vmcnt(0)
{lp}:
buffer_load_dwordx4 v[16:19], v13, s[{SRD_WS}:{SRD_WS+3}], s{S_C} offen sc1
buffer_load_dwordx4 v[20:23], v13, s[{SRD_WS}:{SRD_WS+3}], s{S_C} offen offset:64 sc1
buffer_load_dwordx2 v[24:25], v14, s[{SRD_WS}:{SRD_WS+3}], s{S_D} offen sc1
buffer_load_dwordx2 v[26:27], v14, s[{SRD_WS}:{SRD_WS+3}], s{S_E} offen sc1
s_waitcnt vmcnt(0)
""")
        self.chk_sentinel(range(16, 28), 15)
        a(f"s_cbranch_vccz {dn}")
        self.bound()
        a(f"s_sleep 1\ns_branch {lp}\n{dn}:\ns_waitcnt lgkmcnt(0)")
        for s in range(2):
            for t in range(4):
                r = 64 + (t * 2 + s) * 4
                d = 32 + 4 * t
                c = "0" if s == 0 else f"v[{d}:{d+3}]"
                a(f"v_mfma_f32_16x16x32_bf16 v[{d}:{d+3}], v[{r}:{r+3}], v[{16+4*s}:{19+4*s}], {c}")
        self.role_reduce_write(32)
        a(f"s_cmp_lg_u32 s{S_W}, 0\ns_cbranch_scc1 L_cend")
        a(f"""
v_lshlrev_b32 v10, 7, v5
v_lshl_add_u32 v10, v4, 5, v10
v_add_u32 v10, {L_RX}, v10
v_max_f32 v28, v24, v26
v_sub_f32 v24, v24, v28
v_sub_f32 v26, v26, v28
v_exp_f32 v24, v24
v_exp_f32 v26, v26
v_mul_f32 v28, v24, v25
v_fmac_f32 v28, v26, v27
v_rcp_f32 v28, v28
v_mul_f32 v24, v24, v28
v_mul_f32 v26, v26, v28
v_lshlrev_b32 v11, 10, v4
v_lshl_add_u32 v11, v5, 3, v11
s_lshl_b32 s{S_C}, s{S_X}, 13
s_lshl_b32 s{S_T0}, s{S_B}, 12
s_add_u32 s{S_C}, s{S_C}, s{S_T0}
s_lshl_b32 s{S_T0}, s{S_A}, 8
s_add_u32 s{S_C}, s{S_C}, s{S_T0}
s_and_b32 s{S_T0}, s{S_J}, 1
s_lshl_b32 s{S_T0}, s{S_T0}, 7
s_add_u32 s{S_C}, s{S_C}, s{S_T0}
s_add_u32 s{S_C}, s{S_C}, {CT}
""")
        ex = []
        for v in range(4):
            ex.append(f"ds_read_b128 v[{64+8*v}:{67+8*v}], v10 offset:{v*2048}")
            ex.append(f"ds_read_b128 v[{68+8*v}:{71+8*v}], v10 offset:{v*2048+16}")
        self.lds_wait4(F_RXF, 1, 1, 12, extra="\n".join(ex))
        for k in range(8):
            a(f"v_add_f32 v{64+k}, v{64+k}, v{72+k}\nv_add_f32 v{80+k}, v{80+k}, v{88+k}")
        for k in range(8):
            a(f"v_add_f32 v{64+k}, v{64+k}, v{80+k}")
        for k in range(4):
            a(f"v_mul_f32 v{64+k}, v{64+k}, v24\nv_fmac_f32 v{64+k}, v{68+k}, v26")
        a("""
v_cvt_pk_bf16_f32 v16, v64, v65
v_cvt_pk_bf16_f32 v17, v66, v67
v_min_u32 v16, -2, v16
v_min_u32 v17, -2, v17
""")
        self.store_l([f"buffer_store_dwordx2 v[16:17], v11, s[{SRD_WS}:{SRD_WS+3}], s{S_C} offen"])
        self.stamp(13)
        a(f"s_cmp_lt_u32 s{S_J}, 2\ns_cbranch_scc1 L_final\ns_branch L_cend")

    def p5(self):
        a = self.a
        a("L_p5:")
        a(f"""
s_lshl_b32 s{S_T1}, s{S_W}, 14
s_add_u32 s{S_T1}, s{S_T1}, {L_ROLE}
s_cmp_eq_u32 s{S_W}, 3
s_cselect_b32 s{S_T1}, {L_CKV}, s{S_T1}
""")
        self.tile128_addr(8, S_T1)
        a(f"""
v_and_b32 v12, 7, v0
v_lshlrev_b32 v13, 10, v12
v_lshl_add_u32 v13, v4, 4, v13
s_lshl_b32 s{S_C}, s{S_X}, 13
s_lshl_b32 s{S_T0}, s{S_W}, 8
s_add_u32 s{S_C}, s{S_C}, s{S_T0}
s_add_u32 s{S_C}, s{S_C}, {CT}
""")
        self.lds_wait1(F_LD, 200, 1, 15, sleep=1)
        for t in range(4):
            a(f"v_xor_b32 v15, {t<<5}, v8")
            for s in range(4):
                for e in range(2):
                    r = 64 + (t * 4 + s) * 4 + 2 * e
                    a(f"ds_read_b64_tr_b16 v[{r}:{r+1}], v15 offset:{s*4096+e*2048}")
            a("s_waitcnt lgkmcnt(0)")
        lp, dn = self.L("P5"), self.L("PD")
        a(f"s_waitcnt vmcnt(0)\n{lp}:")
        for s in range(4):
            a(f"buffer_load_dwordx4 v[{16+4*s}:{19+4*s}], v13, s[{SRD_WS}:{SRD_WS+3}], s{S_C} offen offset:{s*64} sc1")
        a("s_waitcnt vmcnt(0)")
        self.chk_sentinel(range(16, 32), 15)
        a(f"s_cbranch_vccz {dn}")
        self.bound()
        a(f"s_sleep 1\ns_branch {lp}\n{dn}:")
        for s in range(4):
            for t in range(4):
                r = 64 + (t * 4 + s) * 4
                d = 32 + 4 * t
                c = "0" if s == 0 else f"v[{d}:{d+3}]"
                a(f"v_mfma_f32_16x16x32_bf16 v[{d}:{d+3}], v[{r}:{r+3}], v[{16+4*s}:{19+4*s}], {c}")
        self.role_reduce_write(32)
        a(f"s_cmp_lg_u32 s{S_W}, 0\ns_cbranch_scc1 L_cend")
        a(f"""
v_lshlrev_b32 v10, 7, v5
v_lshl_add_u32 v10, v4, 4, v10
v_add_u32 v10, {L_RX}, v10
v_lshlrev_b32 v11, 10, v4
v_lshl_add_u32 v11, v5, 3, v11
s_lshl_b32 s{S_C}, s{S_X}, 12
s_lshl_b32 s{S_T0}, s{S_I}, 7
s_add_u32 s{S_C}, s{S_C}, s{S_T0}
s_add_u32 s{S_C}, s{S_C}, {AT}
""")
        ex = []
        for v in range(4):
            ex.append(f"ds_read_b128 v[{64+8*v}:{67+8*v}], v10 offset:{v*2048}")
            ex.append(f"ds_read_b128 v[{68+8*v}:{71+8*v}], v10 offset:{v*2048+64}")
        self.lds_wait4(F_RXF, 1, 1, 12, extra="\n".join(ex))
        for k in range(8):
            a(f"v_add_f32 v{64+k}, v{64+k}, v{72+k}\nv_add_f32 v{80+k}, v{80+k}, v{88+k}")
        for k in range(8):
            a(f"v_add_f32 v{64+k}, v{64+k}, v{80+k}")
        for k in range(4):
            a(f"v_add_f32 v{64+k}, v{64+k}, v{68+k}")
        a(f"""
v_cvt_pk_bf16_f32 v16, v64, v65
v_cvt_pk_bf16_f32 v17, v66, v67
v_min_u32 v16, -2, v16
v_min_u32 v17, -2, v17
buffer_store_dwordx2 v[16:17], v11, s[{SRD_WS}:{SRD_WS+3}], s{S_C} offen sc1
""")
        self.stamp(13)
        a("s_branch L_cend")

    def ident(self, lo, hi, t):
        a = self.a
        a(f"""
v_and_b32 v{t}, 1, v5
v_lshlrev_b32 v{t}, 4, v{t}
v_mov_b32 v{t+1}, 0x3f80
v_lshlrev_b32 v{t}, v{t}, v{t+1}
v_lshrrev_b32 v{t+1}, 1, v5
""")
        for k in range(4):
            a(f"v_cmp_eq_u32 vcc, {k}, v{t+1}\nv_cndmask_b32 v{lo+k}, 0, v{t}, vcc")
        if hi is not None:
            for k in range(4):
                a(f"v_cmp_eq_u32 vcc, {4+k}, v{t+1}\nv_cndmask_b32 v{hi+k}, 0, v{t}, vcc")

    def mlp(self):
        a = self.a
        a("L_mlp:")
        a(srd(SRD_A, P['x'], SIZES['x']))
        a(f"""
v_lshrrev_b32 v8, 5, v0
v_lshlrev_b32 v8, 8, v8
v_lshl_add_u32 v8, v5, 4, v8
v_and_b32 v9, 1, v4
v_lshl_add_u32 v8, v9, 3, v8
s_lshl_b32 s{S_A}, s{S_W}, 10
buffer_load_dwordx2 v[60:61], v8, s[{SRD_A}:{SRD_A+3}], s{S_A} offen
buffer_load_dwordx2 v[62:63], v8, s[{SRD_A}:{SRD_A+3}], s{S_A} offen offset:512
s_mul_i32 s{S_T0}, s{S_W}, {XN_STRIDE}
s_add_u32 s{S_T0}, s{S_T0}, {L_XN}
v_add_u32 v8, s{S_T0}, v8
v_lshlrev_b32 v9, 12, v4
v_lshl_add_u32 v9, v5, 4, v9
s_add_u32 s{S_A}, s{S_A}, {AT}
s_add_u32 s{S_B}, s{S_A}, 16384
s_and_b32 s{S_T0}, s{S_W}, 1
v_and_b32 v10, 1, v4
v_xor_b32 v10, s{S_T0}, v10
v_lshlrev_b32 v10, 5, v10
v_lshrrev_b32 v11, 2, v0
v_lshl_add_u32 v10, v11, 6, v10
v_lshl_add_u32 v10, v2, 3, v10
s_cmp_lt_u32 s{S_W}, 2
s_cselect_b32 s{S_T0}, {L_ROLE}, {L_CKV}
v_add_u32 v10, s{S_T0}, v10
v_and_b32 v12, 7, v11
v_lshlrev_b32 v12, 5, v12
v_lshl_add_u32 v12, v11, 10, v12
v_lshl_add_u32 v12, v2, 3, v12
s_lshl_b32 s{S_T0}, s{S_W}, 8
s_add_u32 s{S_T0}, s{S_T0}, {L_CKV + 0x8000}
v_add_u32 v12, s{S_T0}, v12
s_movk_i32 s{S_T0}, {XN_STRIDE}
v_mul_lo_u32 v13, v2, s{S_T0}
v_lshl_add_u32 v13, v4, 4, v13
v_add_u32 v13, {L_XN}, v13
""")
        self.ident(48, 52, 14)
        self.lds_wait1(F_LD, 200, 1, 15, sleep=1)
        for s in range(16):
            for e in range(2):
                r = 128 + 4 * s + 2 * e
                a(f"ds_read_b64_tr_b16 v[{r}:{r+1}], v10 offset:{s*2048+e*1024}")
            if s % 4 == 3: a("s_waitcnt lgkmcnt(0)")
        for tau in range(8):
            a(f"v_xor_b32 v15, {tau<<5}, v12")
            for e in range(2):
                r = 192 + 4 * tau + 2 * e
                a(f"ds_read_b64_tr_b16 v[{r}:{r+1}], v15 offset:{e*16384}")
            if tau % 4 == 3: a("s_waitcnt lgkmcnt(0)")
        lp, dn = self.L("P6"), self.L("PD")
        a(f"s_waitcnt vmcnt(0)\n{lp}:")
        for q in range(4):
            for i in range(2):
                r = 16 + (q * 2 + i) * 4
                a(f"buffer_load_dwordx4 v[{r}:{r+3}], v9, s[{SRD_WS}:{SRD_WS+3}], s{S_A if i == 0 else S_B} offen offset:{q*256} sc1")
        a("s_waitcnt vmcnt(0)")
        self.chk_sentinel(range(16, 48), 15)
        a(f"s_cbranch_vccz {dn}")
        self.bound()
        a(f"s_sleep 2\ns_branch {lp}\n{dn}:")
        self.stamp(13)
        for qq in range(2):
            for i in range(2):
                for hb in range(2):
                    q = hb * 2 + qq
                    r = 16 + (q * 2 + i) * 4
                    d = 64 + 4 * hb
                    A = 48 if qq == 0 else 52
                    c = "0" if (qq == 0 and i == 0) else f"v[{d}:{d+3}]"
                    a(f"v_mfma_f32_16x16x32_bf16 v[{d}:{d+3}], v[{A}:{A+3}], v[{r}:{r+3}], {c}")
        a(f"s_mov_b32 s{S_D}, 0x3f803f80\nv_mov_b32 v76, 0\nv_mov_b32 v77, 0")
        for k in range(4):
            a(f"""
v_cvt_pk_bf16_f32 v72, v{64+2*k}, v{65+2*k}
v_lshlrev_b32 v73, 16, v72
v_and_b32 v72, 0xffff0000, v72
v_lshlrev_b32 v74, 16, v{60+k}
v_and_b32 v75, 0xffff0000, v{60+k}
v_add_f32 v73, v73, v74
v_add_f32 v72, v72, v75
v_cvt_pk_bf16_f32 v{80+k}, v73, v72
""")
        for k in range(4):
            a(f"v_dot2_f32_bf16 v76, v{80+k}, s{S_D}, v76\nv_dot2_f32_bf16 v77, v{80+k}, v{80+k}, v77")
        self.allred2("v_add_f32", 76, 77, 78, 79, ['q1', 'q2', 4, 8, 16, 32])
        self.ln_stats(76, 77, 78, 79, 72)
        for k in range(4):
            a(f"v_lshlrev_b32 v72, 16, v{80+k}\nv_and_b32 v73, 0xffff0000, v{80+k}")
            self.ln_norm_pair(80 + k, 72, 73, 78, 79)
        a("ds_write_b64 v8, v[80:81]\nds_write_b64 v8, v[82:83] offset:512")
        self.lds_set(F_XNF, 1, 6, 15)
        self.lds_wait4(F_XNF, 1, 1, 16)
        for s in range(16):
            a(f"ds_read_b128 v[{64+4*s}:{67+4*s}], v13 offset:{s*64}")
            if s == 14: a("s_waitcnt lgkmcnt(14)")
        for s in range(16):
            a(f"s_waitcnt lgkmcnt({min(15-s, 14)})")
            d = 16 + 4 * (s & 1)
            c = "0" if s < 2 else f"v[{d}:{d+3}]"
            a(f"v_mfma_f32_16x16x32_bf16 v[{d}:{d+3}], v[{128+4*s}:{131+4*s}], v[{64+4*s}:{67+4*s}], {c}")
        a(f"""
v_lshlrev_b32 v24, 6, v2
v_lshl_add_u32 v24, v4, 4, v24
v_add_u32 v25, v24, v1
s_lshl_b32 s{S_T0}, s{S_W}, 8
v_add_u32 v25, s{S_T0}, v25
v_lshrrev_b32 v26, 5, v0
v_lshlrev_b32 v26, 8, v26
v_lshl_add_u32 v26, v2, 6, v26
v_and_b32 v27, 1, v4
v_lshl_add_u32 v26, v27, 5, v26
v_add_u32 v26, v26, v1
""")
        for k in range(4):
            a(f"v_add_f32 v{16+k}, v{16+k}, v{20+k}")
        a(f"""
s_mov_b64 exec, s[{S_M0}:{S_M0+1}]
ds_write_b128 v25, v[16:19] offset:{O_GU}
s_mov_b64 exec, -1
""")
        self.lds_set(F_GUF, 1, 6, 15)
        a(f"""
s_lshl_b32 s{S_C}, s{S_X}, 3
s_add_u32 s{S_C}, s{S_C}, s{S_I}
s_lshl_b32 s{S_C}, s{S_C}, 12
s_lshl_b32 s{S_T0}, s{S_W}, 10
s_add_u32 s{S_C}, s{S_C}, s{S_T0}
s_add_u32 s{S_C}, s{S_C}, {OUTP}
""")
        self.lds_wait4(F_GUF, 1, 1, 20, extra=f"""ds_read_b128 v[32:35], v26 offset:{O_GU}
ds_read_b128 v[36:39], v26 offset:{O_GU+16}
ds_read_b128 v[40:43], v26 offset:{O_GU+512}
ds_read_b128 v[44:47], v26 offset:{O_GU+528}""")
        for k in range(4):
            a(f"""
v_cvt_pk_bf16_f32 v16, v{32+2*k}, v{33+2*k}
v_cvt_pk_bf16_f32 v17, v{40+2*k}, v{41+2*k}
v_lshlrev_b32 v18, 16, v16
v_and_b32 v16, 0xffff0000, v16
v_lshlrev_b32 v19, 16, v17
v_and_b32 v17, 0xffff0000, v17
v_max_f32 v18, 0, v18
v_max_f32 v16, 0, v16
v_mul_f32 v18, v18, v19
v_mul_f32 v16, v16, v17
v_cvt_pk_bf16_f32 v{48+k}, v18, v16
""")
        for tau in range(8):
            a(f"v_mfma_f32_16x16x32_bf16 v[{64+4*tau}:{67+4*tau}], v[{192+4*tau}:{195+4*tau}], v[48:51], 0")
        for tau in range(8):
            a(f"v_cvt_pk_bf16_f32 v{96+2*tau}, v{64+4*tau}, v{65+4*tau}\nv_cvt_pk_bf16_f32 v{97+2*tau}, v{66+4*tau}, v{67+4*tau}")
        for hb in range(2):
            for k in range(2):
                d = 16 + 2 * hb + k
                b = 96 + 8 * hb + k
                a(f"v_cndmask_b32 v{d}, v{b}, v{b+2}, s[{S_M1}:{S_M1+1}]")
                a(f"v_cndmask_b32 v{d}, v{d}, v{b+4}, s[{S_M2}:{S_M2+1}]")
                a(f"v_cndmask_b32 v{d}, v{d}, v{b+6}, s[{S_M3}:{S_M3+1}]")
                a(f"v_min_u32 v{d}, -2, v{d}")
        a(f"buffer_store_dwordx4 v[16:19], v7, s[{SRD_WS}:{SRD_WS+3}], s{S_C} offen sc1")
        self.stamp(14)
        a("s_branch L_cend")

    def final(self):
        a = self.a
        a("L_final:")
        a(srd(SRD_A, P['x'], SIZES['x']))
        a(srd(SRD_B, P['out'], SIZES['out']))
        a(f"""
s_lshl_b32 s{S_A}, s{S_X}, 1
s_add_u32 s{S_A}, s{S_A}, s{S_J}       ; rho
v_lshlrev_b32 v8, 10, v2
v_lshl_add_u32 v8, v3, 5, v8
v_and_b32 v9, 1, v4
v_lshl_add_u32 v8, v9, 7, v8
s_lshr_b32 s{S_B}, s{S_A}, 2
s_lshl_b32 s{S_B}, s{S_B}, 8
s_and_b32 s{S_T0}, s{S_A}, 3
s_lshl_b32 s{S_T0}, s{S_T0}, 3
s_add_u32 s{S_B}, s{S_B}, s{S_T0}
buffer_load_dwordx2 v[10:11], v8, s[{SRD_A}:{SRD_A+3}], s{S_B} offen
v_lshlrev_b32 v12, 12, v4
v_lshl_add_u32 v12, v5, 4, v12
s_lshl_b32 s{S_C}, s{S_A}, 8
s_add_u32 s{S_C}, s{S_C}, {OUTP}
""")
        self.ident(48, None, 14)
        lp, dn = self.L("PF"), self.L("PD")
        a(f"{lp}:\ns_add_u32 s{S_D}, s{S_B}, {AT}")
        for x in range(8):
            a(f"buffer_load_dwordx2 v[{16+2*x}:{17+2*x}], v8, s[{SRD_WS}:{SRD_WS+3}], s{S_D} offen sc1")
            if x < 7: a(f"s_add_u32 s{S_D}, s{S_D}, 4096")
        a("s_waitcnt vmcnt(0)")
        self.chk_sentinel(range(16, 32), 15)
        a(f"s_cbranch_vccz {dn}")
        self.bound()
        a(f"s_sleep 8\ns_branch {lp}\n{dn}:")
        for k in range(2):
            a(f"v_lshlrev_b32 v{32+2*k}, 16, v{16+k}\nv_and_b32 v{33+2*k}, 0xffff0000, v{16+k}")
            for x in range(1, 8):
                a(f"v_lshlrev_b32 v36, 16, v{16+2*x+k}\nv_and_b32 v37, 0xffff0000, v{16+2*x+k}")
                a(f"v_add_f32 v{32+2*k}, v{32+2*k}, v36\nv_add_f32 v{33+2*k}, v{33+2*k}, v37")
        for k in range(2):
            a(f"""
v_cvt_pk_bf16_f32 v36, v{32+2*k}, v{33+2*k}
v_lshlrev_b32 v37, 16, v36
v_and_b32 v36, 0xffff0000, v36
v_lshlrev_b32 v38, 16, v{10+k}
v_and_b32 v39, 0xffff0000, v{10+k}
v_add_f32 v37, v37, v38
v_add_f32 v36, v36, v39
v_cvt_pk_bf16_f32 v36, v37, v36
v_lshlrev_b32 v{32+2*k}, 16, v36
v_and_b32 v{33+2*k}, 0xffff0000, v36
""")
        lp, dn = self.L("PF"), self.L("PD")
        a(f"{lp}:\ns_mov_b32 s{S_D}, s{S_C}")
        for i in range(14):
            a(f"buffer_load_dwordx4 v[{64+4*i}:{67+4*i}], v12, s[{SRD_WS}:{SRD_WS+3}], s{S_D} offen sc1")
            if i < 13: a(f"s_add_u32 s{S_D}, s{S_D}, 16384")
        a("s_waitcnt vmcnt(0)")
        self.chk_sentinel(range(64, 120), 15)
        a(f"s_cbranch_vccz {dn}")
        self.bound()
        a(f"s_sleep 2\ns_branch {lp}\n{dn}:")
        for i in range(14):
            d = 40 + 4 * (i & 1)
            c = "0" if i < 2 else f"v[{d}:{d+3}]"
            a(f"v_mfma_f32_16x16x32_bf16 v[{d}:{d+3}], v[48:51], v[{64+4*i}:{67+4*i}], {c}")
        for k in range(4):
            a(f"v_add_f32 v{40+k}, v{40+k}, v{44+k}")
        for k in range(2):
            a(f"""
v_cvt_pk_bf16_f32 v36, v{40+2*k}, v{41+2*k}
v_lshlrev_b32 v37, 16, v36
v_and_b32 v36, 0xffff0000, v36
v_add_f32 v37, v37, v{32+2*k}
v_add_f32 v36, v36, v{33+2*k}
v_cvt_pk_bf16_f32 v{44+k}, v37, v36
""")
        a(f"""
s_mov_b32 exec_hi, 0
buffer_store_dwordx2 v[44:45], v8, s[{SRD_B}:{SRD_B+3}], s{S_B} offen
s_mov_b64 exec, -1
s_cmp_lg_u32 s2, 0
s_cbranch_scc1 L_noep
v_mov_b32 v36, s{S_G}
v_mov_b32 v37, 0
s_mov_b64 exec, 1
buffer_store_dword v36, v37, s[{SRD_WS}:{SRD_WS+3}], 0 offen sc1
s_mov_b64 exec, -1
L_noep:
""")
        self.stamp(14)
        a("s_branch L_cend")

    def build(self):
        a = self.a
        self.prologue()
        self.p1()
        if self.stop > 2:
            self.p3()
        if self.stop > 3:
            self.pc()
        if self.stop > 4:
            a(f"""
s_cmp_lt_u32 s{S_J}, 16
s_cbranch_scc1 L_p4
s_cmp_lt_u32 s{S_J}, 24
s_cbranch_scc1 L_p5
s_cmp_lg_u32 s{S_X}, 7
s_cbranch_scc1 L_mlp
""")
        a("L_cend:")
        self.finish_compute()
        if self.stop > 4:
            self.p4(); self.p5(); self.mlp(); self.final()
        self.aux()
        self.loader()
        a("L_done:\ns_endpgm\nL_codeend:")
        a(kdesc(NAME + "_kernel", vgpr=256, sgpr=102))
        text, n = hazard.run(a.text())
        return text

def finalize(text, npf):
    pf = []
    for i in range(npf):
        pf.append(f"global_load_dword v{100+i}, v2, s[{S_EX}:{S_EX+1}]")
        if i < npf - 1: pf.append("v_add_u32 v2, 8192, v2")
    return text.replace(";PREFETCH", "\n".join(pf))

if __name__ == "__main__":
    import argparse, subprocess
    ap = argparse.ArgumentParser()
    ap.add_argument("out")
    ap.add_argument("--stamps", action="store_true")
    ap.add_argument("--stop", type=int, default=99)
    ap.add_argument("--lmode", action="store_true")
    ap.add_argument("--nfront", type=int, default=20)
    ap.add_argument("--nrole", type=int, default=12)
    ap.add_argument("--nopf", action="store_true")
    o = ap.parse_args()
    g = G(stamps=o.stamps, stop=o.stop, lmode=o.lmode, nfront=o.nfront, nrole=o.nrole, prefetch=not o.nopf)
    text = g.build()
    open("_g.s", "w").write(finalize(text, 1))
    subprocess.check_call(["clang", "-x", "assembler", "-target", "amdgcn-amd-amdhsa", "-mcpu=gfx950", "-c", "_g.s", "-o", "_g.o"])
    out = subprocess.check_output(["llvm-objdump", "-h", "_g.o"]).decode()
    size = [int(l.split()[2], 16) for l in out.split("\n") if " .text" in l][0]
    npf = (size + 8191) // 8192
    text = finalize(text, npf)
    pad = npf * 8192 + 512 - size
    text = text.replace("L_codeend:", f"L_codeend:\n.fill {pad//4}, 4, 0xbf810000")
    open(o.out, "w").write(text)
    print("code bytes", size, "prefetch chunks", npf)
```

```python
import sys, math
from asmlib import *
import hazard

EPOCH = 0x0
READY = 0x1000
H1 = 0x10000
H2 = 0x80000
CLR = 0x100000
STATS = 0x100000
OC = 0x140000
OCS = 0x180000
CT = 0x190000
AT = 0x1A0000
OUTP = 0x1C0000
OPART = 0x1000000
STAMP = 0x4000000
L_CKV = 0x0
L_WQ = 0x10000
L_WUK = 0x14000
L_QIMG = 0x10000
L_CX = 0x10000
L_RX = 0x12000
L_XN = 0x14000
XN_STRIDE = 1056
L_ROLE = 0x18000
SCR = 0x26000
F_LD, F_GOQ = 0, 4
F_QOK, F_CKVFREE, F_PF, F_MXF, F_CXF, F_RXF, F_XNF, F_GUF = 16, 32, 48, 64, 80, 96, 112, 128
O_MX = 0x200
O_PX = 0x400
O_CS = 0x1400
O_GU = 0x1800
LDS_BYTES = 0x28000

SCALE_LOG2E = (128 ** -0.5) * math.log2(math.e)
import struct
def f2u(x): return struct.unpack("<I", struct.pack("<f", x))[0]

S_X, S_J, S_W = 3, 4, 5
S_T0, S_T1 = 6, 7
P = dict(x=8, ckv=10, wq=12, wuk=14, wuv=16, wo=18, bx=20, wg=22, wu=24, wd=26, out=28, dbg=30, ws=32)
S_CNT = 34
S_MODE = 35
SRD_WS = 36
SRD_A = 40
SRD_B = 44
SRD_C = 48
S_H = 52
S_I = 53
S_A, S_B, S_C, S_D, S_E, S_F = 54, 55, 56, 57, 58, 59
S_M0, S_M1, S_M2, S_M3 = 60, 62, 64, 66
S_TAG = 68
S_G = 69
S_EX = 70
S_ST = 72
LIMIT = 1 << 21

class G:
    def __init__(self, stamps=False, stop=99, lmode=False, nfront=20, nrole=12, prefetch=True, dbg=False):
        self.a = Asm()
        self.dbg = dbg
        self.stamps = stamps
        self.stop = stop
        self.lmode = lmode
        self.nfront = nfront
        self.nrole = nrole
        self.prefetch = prefetch
        self.lab = 0
    def L(self, p="L"):
        self.lab += 1
        return f"{p}_{self.lab}"
    def stamp(self, k):
        if self.stamps:
            self.a(f"s_memrealtime s[{S_ST+2*k}:{S_ST+2*k+1}]")
    def stamp_init(self, n):
        if self.stamps:
            for k in range(n):
                self.a(f"s_mov_b64 s[{S_ST+2*k}:{S_ST+2*k+1}], 0")
    def stamp_dump(self, n, slot):
        if not self.stamps: return
        a = self.a
        a("s_waitcnt lgkmcnt(0)\ns_mov_b64 exec, 1")
        a(f"s_lshl_b32 s{S_T0}, s2, 9\ns_add_u32 s{S_T0}, s{S_T0}, {STAMP + slot*8}\nv_mov_b32 v2, 0")
        for k in range(n):
            a(f"v_mov_b32 v4, s{S_ST+2*k}\nv_mov_b32 v5, s{S_ST+2*k+1}")
            a(f"buffer_store_dwordx2 v[4:5], v2, s[{SRD_WS}:{SRD_WS+3}], s{S_T0} offen offset:{8*k}")
            a("s_waitcnt vmcnt(0)")
        a("s_mov_b64 exec, -1")
    def bound(self):
        self.a(f"s_add_u32 s{S_CNT}, s{S_CNT}, 1\ns_cmp_lt_u32 s{S_CNT}, {LIMIT}\ns_cbranch_scc0 L_done")
    def lds_wait1(self, off, val, vs, vt, sleep=0):
        l, d = self.L("W"), self.L("D")
        self.a(f"""
{l}:
ds_read_b32 v{vt}, v{vs} offset:{off}
s_waitcnt lgkmcnt(0)
v_readfirstlane_b32 s{S_T0}, v{vt}
s_cmp_ge_u32 s{S_T0}, {val}
s_cbranch_scc1 {d}""")
        self.bound()
        if sleep: self.a(f"s_sleep {sleep}")
        self.a(f"s_branch {l}\n{d}:")
    def lds_wait4(self, off, val, vs, vt, extra="", sleep=0):
        l, d = self.L("W"), self.L("D")
        self.a(f"{l}:\nds_read_b128 v[{vt}:{vt+3}], v{vs} offset:{off}")
        if extra: self.a(extra)
        self.a(f"""
s_waitcnt lgkmcnt(0)
v_min_u32 v{vt}, v{vt}, v{vt+1}
v_min3_u32 v{vt}, v{vt}, v{vt+2}, v{vt+3}
v_readfirstlane_b32 s{S_T0}, v{vt}
s_cmp_ge_u32 s{S_T0}, {val}
s_cbranch_scc1 {d}""")
        self.bound()
        if sleep: self.a(f"s_sleep {sleep}")
        self.a(f"s_branch {l}\n{d}:")
    def lds_set(self, off, val, vaddr, vt):
        self.a(f"v_mov_b32 v{vt}, {val}\nds_write_b32 v{vaddr}, v{vt} offset:{off}")
    def chk_sentinel(self, regs, vt):
        a = self.a
        regs = list(regs)
        a(f"v_max3_u32 v{vt}, v{regs[0]}, v{regs[1]}, v{regs[2]}" if len(regs) >= 3 else f"v_max_u32 v{vt}, v{regs[0]}, v{regs[1]}")
        rest = regs[3:] if len(regs) >= 3 else []
        while rest:
            if len(rest) >= 2:
                a(f"v_max3_u32 v{vt}, v{vt}, v{rest[0]}, v{rest[1]}"); rest = rest[2:]
            else:
                a(f"v_max_u32 v{vt}, v{vt}, v{rest[0]}"); rest = rest[1:]
        a(f"v_cmp_eq_u32 vcc, -1, v{vt}")
    def store_l(self, instr):
        if not self.lmode:
            for i in instr: self.a(i + " sc1")
            return
        l1, l2 = self.L("SL"), self.L("SE")
        self.a(f"s_cmp_eq_u32 s{S_MODE}, 1\ns_cbranch_scc1 {l1}")
        for i in instr: self.a(i + " sc1")
        self.a(f"s_branch {l2}\n{l1}:")
        for i in instr: self.a(i)
        self.a(f"{l2}:")
    def bf16r(self, d, s):
        self.a(f"v_cvt_pk_bf16_f32 v{d}, v{s}, v{s}\nv_and_b32 v{d}, 0xffff0000, v{d}")
    def allred(self, op, v, t, steps):
        a = self.a
        for s in steps:
            if s == 'q1': a(f"{op}_dpp v{v}, v{v}, v{v} quad_perm:[1,0,3,2] row_mask:0xf bank_mask:0xf")
            elif s == 'q2': a(f"{op}_dpp v{v}, v{v}, v{v} quad_perm:[2,3,0,1] row_mask:0xf bank_mask:0xf")
            elif s in (4, 8): a(f"{op}_dpp v{v}, v{v}, v{v} row_ror:{s} row_mask:0xf bank_mask:0xf")
            elif s == 16: a(f"v_mov_b32 v{t}, v{v}\nv_permlane16_swap_b32 v{v}, v{t}\n{op} v{v}, v{v}, v{t}")
            elif s == 32: a(f"v_mov_b32 v{t}, v{v}\nv_permlane32_swap_b32 v{v}, v{t}\n{op} v{v}, v{v}, v{t}")
    def allred2(self, op, v1, v2, t1, t2, steps):
        a = self.a
        for s in steps:
            for v, t in ((v1, t1), (v2, t2)):
                if s == 'q1': a(f"{op}_dpp v{v}, v{v}, v{v} quad_perm:[1,0,3,2] row_mask:0xf bank_mask:0xf")
                elif s == 'q2': a(f"{op}_dpp v{v}, v{v}, v{v} quad_perm:[2,3,0,1] row_mask:0xf bank_mask:0xf")
                elif s in (4, 8): a(f"{op}_dpp v{v}, v{v}, v{v} row_ror:{s} row_mask:0xf bank_mask:0xf")
            if s in (16, 32):
                a(f"v_mov_b32 v{t1}, v{v1}\nv_mov_b32 v{t2}, v{v2}")
                a(f"v_permlane{s}_swap_b32 v{v1}, v{t1}\nv_permlane{s}_swap_b32 v{v2}, v{t2}")
                a(f"{op} v{v1}, v{v1}, v{t1}\n{op} v{v2}, v{v2}, v{t2}")
    def ln_stats(self, s1, s2, vm, vr, t):
        a = self.a
        a(f"""
v_mul_f32 v{s1}, 0x3b000000, v{s1}
v_mul_f32 v{s2}, 0x3b000000, v{s2}
v_fma_f32 v{s2}, -v{s1}, v{s1}, v{s2}
v_max_f32 v{s2}, 0, v{s2}
""")
        self.bf16r(vm, s1)
        self.bf16r(t, s2)
        a(f"v_add_f32 v{t}, 0x{f2u(1e-5):08x}, v{t}")
        self.bf16r(t, t)
        a(f"v_sqrt_f32 v{t}, v{t}")
        self.bf16r(t, t)
        a(f"v_rcp_f32 v{vr}, v{t}")
    def ln_norm_pair(self, dst, lo, hi, vm, vr):
        self.a(f"""
v_sub_f32 v{lo}, v{lo}, v{vm}
v_sub_f32 v{hi}, v{hi}, v{vm}
v_cvt_pk_bf16_f32 v{hi}, v{lo}, v{hi}
v_lshlrev_b32 v{lo}, 16, v{hi}
v_and_b32 v{hi}, 0xffff0000, v{hi}
v_mul_f32 v{lo}, v{lo}, v{vr}
v_mul_f32 v{hi}, v{hi}, v{vr}
v_cvt_pk_bf16_f32 v{dst}, v{lo}, v{hi}
""")

    def prologue(self):
        a = self.a
        K = NAME + "_kernel"
        a(header([(None, 256, 384, LDS_BYTES)]))
        a(kstart(K))
        a(f"""
s_cmp_ge_u32 s2, 256
s_cbranch_scc1 L_done
s_load_dwordx16 s[8:23], s[0:1], 0
s_load_dwordx8 s[24:31], s[0:1], 64
s_load_dwordx2 s[32:33], s[0:1], 96
v_lshrrev_b32 v1, 6, v0
v_and_b32 v0, 63, v0
v_readfirstlane_b32 s{S_W}, v1
s_and_b32 s{S_X}, s2, 7
s_lshr_b32 s{S_J}, s2, 3
s_mov_b32 s{S_CNT}, 0
s_mov_b32 s{S_MODE}, 0
""")
        self.stamp_init(15)
        self.stamp(0)
        if self.prefetch:
            a(f"""
s_cmp_lg_u32 s{S_W}, 4
s_cbranch_scc1 L_nopf
s_getpc_b64 s[{S_EX}:{S_EX+1}]
v_lshlrev_b32 v2, 7, v0
""")
            a(";PREFETCH")
            a("L_nopf:")
        a(f"""
v_mov_b32 v1, {SCR}
v_lshl_add_u32 v2, v0, 2, v1
v_mov_b32 v3, 0
s_cmp_lg_u32 s{S_W}, 0
s_cbranch_scc1 L_noinit
ds_write_b32 v2, v3
L_noinit:
s_lshl_b32 s{S_H}, s{S_X}, 2
s_lshr_b32 s{S_T0}, s{S_J}, 3
s_add_u32 s{S_H}, s{S_H}, s{S_T0}
s_and_b32 s{S_I}, s{S_J}, 7
s_mov_b32 s{S_M0}, 0x000f000f
s_mov_b32 s{S_M0+1}, 0x000f000f
s_mov_b32 s{S_M1}, 0x00f000f0
s_mov_b32 s{S_M1+1}, 0x00f000f0
s_mov_b32 s{S_M2}, 0x0f000f00
s_mov_b32 s{S_M2+1}, 0x0f000f00
s_mov_b32 s{S_M3}, 0xf000f000
s_mov_b32 s{S_M3+1}, 0xf000f000
s_waitcnt lgkmcnt(0)
""")
        a(srd(SRD_WS, P['ws'], SIZES['ws']))
        a(f"""
s_cmp_eq_u32 s{S_W}, 5
s_cbranch_scc1 L_loader
s_barrier
s_cmp_eq_u32 s{S_W}, 4
s_cbranch_scc1 L_aux
""")

    def loader(self):
        a = self.a
        N = self.nfront
        a("L_loader:")
        a("s_setprio 2")
        a(srd(SRD_A, P['wq'], SIZES['wq']))
        a(srd(SRD_B, P['wuk'], SIZES['wuk']))
        a(srd(SRD_C, P['ckv'], SIZES['ckv']))
        a(f"""
v_lshrrev_b32 v4, 3, v0
v_and_b32 v5, 7, v0
v_lshrrev_b32 v6, 4, v0
v_lshlrev_b32 v7, 1, v6
v_xor_b32 v5, v5, v7
v_lshlrev_b32 v5, 4, v5
v_and_b32 v7, 3, v4
v_lshrrev_b32 v8, 5, v0
v_lshl_add_u32 v7, v8, 3, v7
v_lshl_add_u32 v10, v7, 13, v5
v_add_u32 v11, {16*8192}, v10
v_add_u32 v12, {4*8192}, v10
v_add_u32 v13, {20*8192}, v10
s_lshr_b32 s{S_A}, s{S_I}, 1
s_lshl_b32 s{S_A}, s{S_A}, 20
s_lshl_b32 s{S_B}, s{S_H}, 8
s_add_u32 s{S_A}, s{S_A}, s{S_B}
s_and_b32 s{S_C}, s{S_I}, 1
s_lshl_b32 s{S_C}, s{S_C}, 7
s_add_u32 s{S_A}, s{S_A}, s{S_C}
s_mov_b32 m0, {L_WQ}
""")
        for blk in range(4):
            for sub in range(4):
                a(f"buffer_load_dwordx4 v{10+sub}, s[{SRD_A}:{SRD_A+3}], s{S_A} offen nt lds")
                a("s_add_u32 m0, m0, 1024")
            a(f"s_add_u32 s{S_A}, s{S_A}, {32*8192}")
        a("s_barrier")
        issued = 16
        marks = [16, 32, 96]
        def after_issue():
            nonlocal issued
            issued += 1
            a(f"s_waitcnt vmcnt({N})")
            if issued - N in marks:
                self.lds_set(F_LD, issued - N, 1, 3)
                self.stamp(1 + marks.index(issued - N))
        a(f"""
v_and_b32 v14, 15, v0
v_xor_b32 v14, v14, v6
v_lshlrev_b32 v14, 4, v14
v_lshl_add_u32 v14, v6, 13, v14
v_xor_b32 v15, 64, v14
v_xor_b32 v16, 128, v14
v_xor_b32 v17, 192, v14
s_lshl_b32 s{S_A}, s{S_I}, 19
s_add_u32 s{S_A}, s{S_A}, s{S_B}
v_lshlrev_b32 v18, 4, v0
""")
        for r in range(16):
            f = ((r & 3) << 2) | ((r >> 2) & 3)
            a(f"v_xor_b32 v{20+r}, {f*16}, v18")
            if r: a(f"v_add_u32 v{20+r}, {r*1024}, v{20+r}")
        for q in range(16):
            a(f"buffer_load_dwordx4 v{14+((q>>1)&3)}, s[{SRD_B}:{SRD_B+3}], s{S_A} offen nt lds")
            a("s_add_u32 m0, m0, 1024")
            a(f"s_add_u32 s{S_A}, s{S_A}, {4*8192}")
            after_issue()
        a(f"""
s_lshl_b32 s{S_A}, s{S_X}, 5
s_add_u32 s{S_A}, s{S_A}, s{S_J}
s_lshl_b32 s{S_A}, s{S_A}, 16
s_mov_b32 m0, {L_CKV}
""")
        for blk in range(4):
            for r in range(16):
                a(f"buffer_load_dwordx4 v{20+r}, s[{SRD_C}:{SRD_C+3}], s{S_A} offen nt lds")
                a("s_add_u32 m0, m0, 1024")
                after_issue()
            a(f"s_add_u32 s{S_A}, s{S_A}, 16384")
        a("s_waitcnt vmcnt(0)")
        self.lds_set(F_LD, 96, 1, 3)
        self.stamp(3)
        if self.stop <= 4:
            self.stamp_dump(6, 24)
            a("s_endpgm")
            return
        NR = self.nrole
        a(f"""
s_cmp_lt_u32 s{S_J}, 16
s_cbranch_scc1 L_ld_p4
s_cmp_lt_u32 s{S_J}, 24
s_cbranch_scc1 L_ld_p5
s_cmp_eq_u32 s{S_X}, 7
s_cbranch_scc1 L_ld_fin
""")
        a(srd(SRD_A, P['wg'], SIZES['wg']))
        a(srd(SRD_B, P['wu'], SIZES['wu']))
        a(srd(SRD_C, P['wd'], SIZES['wd']))
        a(f"""
s_lshl_b32 s{S_B}, s{S_X}, 3
s_add_u32 s{S_B}, s{S_B}, s{S_I}        ; fs
v_lshrrev_b32 v7, 2, v0
v_and_b32 v7, 3, v7
v_lshl_add_u32 v7, v6, 3, v7
s_movk_i32 s{S_C}, 3584
v_mul_lo_u32 v7, v7, s{S_C}
v_and_b32 v8, 1, v6
v_lshlrev_b32 v8, 1, v8
v_and_b32 v9, 3, v0
v_xor_b32 v8, v8, v9
v_lshl_add_u32 v10, v8, 4, v7
v_add_u32 v11, {4*3584}, v10
s_lshl_b32 s{S_A}, s{S_B}, 6
s_mov_b32 m0, {L_ROLE}
s_mov_b32 s{S_D}, 0
L_ld_g:
buffer_load_dwordx4 v10, s[{SRD_A}:{SRD_A+3}], s{S_A} offen nt lds
s_add_u32 m0, m0, 1024
s_waitcnt vmcnt({NR})
buffer_load_dwordx4 v11, s[{SRD_A}:{SRD_A+3}], s{S_A} offen nt lds
s_add_u32 m0, m0, 1024
s_add_u32 s{S_A}, s{S_A}, {32*3584}
s_add_u32 s{S_D}, s{S_D}, 1
s_waitcnt vmcnt({NR})
s_cmp_lt_u32 s{S_D}, 16
s_cbranch_scc1 L_ld_g
""")
        self.lds_wait4(F_CKVFREE, 1, 1, 40)
        a(f"""
s_lshl_b32 s{S_A}, s{S_B}, 6
s_mov_b32 m0, {L_CKV}
s_mov_b32 s{S_D}, 0
L_ld_u:
buffer_load_dwordx4 v10, s[{SRD_B}:{SRD_B+3}], s{S_A} offen nt lds
s_add_u32 m0, m0, 1024
s_waitcnt vmcnt({NR})
buffer_load_dwordx4 v11, s[{SRD_B}:{SRD_B+3}], s{S_A} offen nt lds
s_add_u32 m0, m0, 1024
s_add_u32 s{S_A}, s{S_A}, {32*3584}
s_add_u32 s{S_D}, s{S_D}, 1
s_waitcnt vmcnt({NR})
s_cmp_lt_u32 s{S_D}, 16
s_cbranch_scc1 L_ld_u
s_lshl_b32 s{S_A}, s{S_B}, 15
""")
        for k in range(8):
            a(f"v_xor_b32 v{20+k}, {k*32}, v18")
        for slot in range(32):
            e, kg, rr = slot >> 4, (slot >> 2) & 3, slot & 3
            row = 8 * kg + 4 * e + rr
            a(f"s_add_u32 s{S_C}, s{S_A}, {row*1024}")
            a(f"buffer_load_dwordx4 v{20+(slot&7)}, s[{SRD_C}:{SRD_C+3}], s{S_C} offen nt lds")
            a("s_add_u32 m0, m0, 1024")
            a(f"s_waitcnt vmcnt({NR})")
        a("s_branch L_ld_fin")
        a("L_ld_p4:")
        a(srd(SRD_A, P['wuv'], SIZES['wuv']))
        a(f"""
v_lshl_add_u32 v10, v4, 13, v5
v_add_u32 v11, {16*8192}, v10
v_add_u32 v12, {8*8192}, v10
v_add_u32 v13, {24*8192}, v10
s_lshr_b32 s{S_A}, s{S_J}, 2
s_lshl_b32 s{S_B}, s{S_X}, 2
s_add_u32 s{S_A}, s{S_A}, s{S_B}
s_lshl_b32 s{S_A}, s{S_A}, 8          ; h*256
s_and_b32 s{S_B}, s{S_J}, 1
s_lshl_b32 s{S_B}, s{S_B}, 7
s_add_u32 s{S_A}, s{S_A}, s{S_B}
s_lshr_b32 s{S_B}, s{S_J}, 1
s_and_b32 s{S_B}, s{S_B}, 1
s_lshl_b32 s{S_B}, s{S_B}, 21
s_add_u32 s{S_A}, s{S_A}, s{S_B}
s_mov_b32 m0, {L_ROLE}
s_mov_b32 s{S_D}, 0
L_ld_p4l:
""")
        for sub in range(4):
            a(f"buffer_load_dwordx4 v{10+sub}, s[{SRD_A}:{SRD_A+3}], s{S_A} offen nt lds")
            a("s_add_u32 m0, m0, 1024")
            a(f"s_waitcnt vmcnt({NR})")
        a(f"""
s_add_u32 s{S_A}, s{S_A}, {32*8192}
s_add_u32 s{S_D}, s{S_D}, 1
s_cmp_lt_u32 s{S_D}, 8
s_cbranch_scc1 L_ld_p4l
s_branch L_ld_fin
""")
        a("L_ld_p5:")
        a(srd(SRD_A, P['wo'], SIZES['wo']))
        a(f"""
v_lshl_add_u32 v10, v7, 10, v5
v_add_u32 v11, {16*1024}, v10
v_add_u32 v12, {4*1024}, v10
v_add_u32 v13, {20*1024}, v10
s_lshl_b32 s{S_A}, s{S_X}, 19
s_lshl_b32 s{S_B}, s{S_I}, 7
s_add_u32 s{S_A}, s{S_A}, s{S_B}
s_mov_b32 m0, {L_ROLE}
s_mov_b32 s{S_D}, 0
L_ld_p5l:
""")
        for sub in range(4):
            a(f"buffer_load_dwordx4 v{10+sub}, s[{SRD_A}:{SRD_A+3}], s{S_A} offen nt lds")
            a("s_add_u32 m0, m0, 1024")
            a(f"s_waitcnt vmcnt({NR})")
        a(f"""
s_add_u32 s{S_A}, s{S_A}, {32*1024}
s_add_u32 s{S_D}, s{S_D}, 1
s_cmp_lg_u32 s{S_D}, 12
s_cbranch_scc1 L_ld_p5n
""")
        self.lds_wait4(F_CKVFREE, 1, 1, 40)
        a(f"""
s_mov_b32 m0, {L_CKV}
L_ld_p5n:
s_cmp_lt_u32 s{S_D}, 16
s_cbranch_scc1 L_ld_p5l
L_ld_fin:
s_waitcnt vmcnt(0)
""")
        self.lds_set(F_LD, 200, 1, 3)
        self.stamp(4)
        a("s_waitcnt lgkmcnt(0)")
        self.stamp_dump(6, 24)
        a("s_endpgm")

    def aux(self):
        a = self.a
        a("L_aux:")
        a(f"""
v_mov_b32 v2, 0
buffer_load_dword v4, v2, s[{SRD_WS}:{SRD_WS+3}], 0 offen sc1
v_mov_b32 v8, -1
v_mov_b32 v9, -1
v_mov_b32 v10, -1
v_mov_b32 v11, -1
v_lshlrev_b32 v5, 4, v0
s_lshl_b32 s{S_A}, s2, 12
s_add_u32 s{S_A}, s{S_A}, {CLR}
buffer_store_dwordx4 v[8:11], v5, s[{SRD_WS}:{SRD_WS+3}], s{S_A} offen sc1
buffer_store_dwordx4 v[8:11], v5, s[{SRD_WS}:{SRD_WS+3}], s{S_A} offen offset:1024 sc1
buffer_store_dwordx4 v[8:11], v5, s[{SRD_WS}:{SRD_WS+3}], s{S_A} offen offset:2048 sc1
buffer_store_dwordx4 v[8:11], v5, s[{SRD_WS}:{SRD_WS+3}], s{S_A} offen offset:3072 sc1
v_and_b32 v6, 3, v0
v_lshlrev_b32 v6, 15, v6
v_lshrrev_b32 v7, 2, v0
v_and_b32 v7, 3, v7
v_lshl_add_u32 v6, v7, 6, v6
v_lshrrev_b32 v12, 4, v0
v_lshl_add_u32 v6, v12, 4, v6
s_lshl_b32 s{S_B}, s{S_H}, 10
s_lshl_b32 s{S_C}, s{S_I}, 7
s_add_u32 s{S_B}, s{S_B}, s{S_C}
s_add_u32 s{S_B}, s{S_B}, {H2}
s_or_b64 s[{S_EX}:{S_EX+1}], s[{S_M0}:{S_M0+1}], s[{S_M1}:{S_M1+1}]
s_mov_b64 exec, s[{S_EX}:{S_EX+1}]
buffer_store_dwordx4 v[8:11], v6, s[{SRD_WS}:{SRD_WS+3}], s{S_B} offen sc1
s_mov_b64 exec, -1
s_getreg_b32 s{S_G}, hwreg(HW_REG_XCC_ID)
v_and_b32 v13, 3, v0
v_lshlrev_b32 v13, 4, v13
v_lshl_add_u32 v13, v7, 11, v13
v_lshl_add_u32 v13, v12, 7, v13
s_lshl_b32 s{S_C}, s{S_H}, 13
s_add_u32 s{S_C}, s{S_C}, {H1}
v_and_b32 v14, 3, v0
v_lshl_add_u32 v15, v7, 3, v14
v_lshlrev_b32 v15, 8, v15
v_xor_b32 v14, v14, v12
v_lshl_add_u32 v14, v7, 2, v14
v_lshl_add_u32 v16, v14, 4, v15
v_add_u32 v16, {L_WUK}, v16
v_xor_b32 v17, 64, v16
v_xor_b32 v18, 128, v16
v_xor_b32 v19, 192, v16
s_waitcnt vmcnt(0)
v_readfirstlane_b32 s{S_TAG}, v4
s_add_u32 s{S_TAG}, s{S_TAG}, 1
s_mul_i32 s{S_TAG}, s{S_TAG}, 0x9e3779b1
v_mov_b32 v8, s{S_TAG}
v_mov_b32 v9, s{S_G}
s_lshl_b32 s{S_A}, s2, 3
s_add_u32 s{S_A}, s{S_A}, {READY}
s_mov_b64 exec, 1
buffer_store_dwordx2 v[8:9], v2, s[{SRD_WS}:{SRD_WS+3}], s{S_A} offen sc1
s_mov_b64 exec, -1
""")
        self.stamp(1)
        self.lds_wait1(F_LD, 32, 1, 3, sleep=1)
        for tau in range(2):
            for sig in range(2):
                for s in range(4):
                    r = 64 + ((tau * 2 + sig) * 4 + s) * 4
                    a(f"ds_read_b128 v[{r}:{r+3}], v{16+s} offset:{tau*8192+sig*1024}")
        self.stamp(2)
        lp = self.L("PH1")
        a(f"v_lshlrev_b32 v20, 5, v0\ns_mov_b32 s{S_D}, {READY}")
        a(f"{lp}:")
        for s in range(4):
            for e in range(2):
                r = 24 + (s * 2 + e) * 4
                a(f"buffer_load_dwordx4 v[{r}:{r+3}], v13, s[{SRD_WS}:{SRD_WS+3}], s{S_C} offen offset:{s*512+e*64} sc1")
        a(f"buffer_load_dwordx4 v[56:59], v20, s[{SRD_WS}:{SRD_WS+3}], s{S_D} offen sc1")
        a(f"buffer_load_dwordx4 v[60:63], v20, s[{SRD_WS}:{SRD_WS+3}], s{S_D} offen offset:16 sc1")
        a("s_waitcnt vmcnt(0)")
        a(f"v_xor_b32 v21, s{S_TAG}, v25")
        tags = [24 + 2 * k + 1 for k in range(1, 16)] + [56, 58, 60, 62]
        for t in tags:
            a(f"v_bitop3_b32 v21, v21, v{t}, v8 bitop3:0xf6")
        a("v_cmp_ne_u32 vcc, 0, v21")
        dn = self.L("PD")
        a(f"s_cbranch_vccz {dn}")
        self.bound()
        a(f"s_sleep 2\ns_branch {lp}\n{dn}:")
        self.stamp(3)
        for s in range(4):
            b = 24 + 8 * s
            a(f"v_mov_b32 v{b+1}, v{b+2}\nv_mov_b32 v{b+2}, v{b+4}\nv_mov_b32 v{b+3}, v{b+6}")
        a("s_waitcnt lgkmcnt(0)")
        for s in range(4):
            for t in range(4):
                r = 64 + (t * 4 + s) * 4
                d = 128 + 4 * t
                c = "0" if s == 0 else f"v[{d}:{d+3}]"
                a(f"v_mfma_f32_16x16x32_bf16 v[{d}:{d+3}], v[{r}:{r+3}], v[{24+8*s}:{27+8*s}], {c}")
        if self.lmode:
            a(f"""
v_and_b32 v22, 1, v0
v_lshlrev_b32 v22, 2, v22
v_mov_b32 v23, 0
""")
            for k in range(4):
                a(f"""
v_add_u32 v21, {k}, v22
v_cmp_eq_u32 vcc, s{S_X}, v21
v_xor_b32 v21, v9, v{57+2*k}
v_cndmask_b32 v21, 0, v21, vcc
v_or_b32 v23, v23, v21
""")
            a(f"""
v_cmp_ne_u32 vcc, 0, v23
s_cmp_eq_u64 vcc, 0
s_cselect_b32 s{S_MODE}, 1, 0
""")
        for k in range(16):
            a(f"v_add_f32_dpp v{128+k}, v{128+k}, v{128+k} row_ror:4 row_mask:0xf bank_mask:0xf")
        for k in range(16):
            a(f"v_add_f32_dpp v{128+k}, v{128+k}, v{128+k} row_ror:8 row_mask:0xf bank_mask:0xf")
        for k in range(8):
            a(f"v_cvt_pk_bf16_f32 v{144+k}, v{128+2*k}, v{129+2*k}")
        for k in range(4):
            a(f"v_cndmask_b32 v{144+k}, v{144+k}, v{148+k}, s[{S_M1}:{S_M1+1}]")
            a(f"v_min_u32 v{144+k}, -2, v{144+k}")
        a(f"""
s_mov_b64 exec, s[{S_EX}:{S_EX+1}]
buffer_store_dwordx4 v[144:147], v6, s[{SRD_WS}:{SRD_WS+3}], s{S_B} offen sc1
s_mov_b64 exec, -1
""")
        self.stamp(4)
        a(f"s_waitcnt vmcnt(0)\ns_add_u32 s{S_T0}, s{S_MODE}, 1\nv_mov_b32 v3, s{S_T0}\nds_write_b32 v1, v3 offset:{F_GOQ}")
        self.stamp(5)
        a("s_waitcnt lgkmcnt(0)")
        self.stamp_dump(6, 16)
        a("s_endpgm")

    def finish_compute(self):
        a = self.a
        if self.stamps:
            l = self.L("NS")
            a(f"s_cmp_lg_u32 s{S_W}, 0\ns_cbranch_scc1 {l}")
            self.stamp_dump(15, 0)
            if self.dbg:
                a(f"s_cmp_lg_u32 s2, 0\ns_cbranch_scc1 {l}")
                a(srd(SRD_A, P['dbg'], 256))
                a("s_mov_b64 exec, 1\nv_mov_b32 v2, 0")
                for k in range(15):
                    a(f"s_sub_u32 s{S_T0}, s{S_ST+2*k}, s{S_ST}\nv_mov_b32 v4, s{S_T0}")
                    a(f"buffer_store_dword v4, v2, s[{SRD_A}:{SRD_A+3}], 0 offen offset:{4*k}\ns_waitcnt vmcnt(0)")
            a(f"{l}:")
        a("s_endpgm")

    def p1(self):
        a = self.a
        a(srd(SRD_A, P['x'], SIZES['x']))
        a(f"""
v_and_b32 v2, 3, v0
v_lshrrev_b32 v7, 2, v0
v_and_b32 v3, 3, v7
v_lshrrev_b32 v4, 4, v0
v_and_b32 v5, 15, v0
s_lshl_b32 s{S_T0}, s{S_W}, 2
v_add_u32 v6, s{S_T0}, v1
v_lshlrev_b32 v32, 10, v2
v_lshl_add_u32 v33, v7, 6, v32
buffer_load_dwordx4 v[8:11], v33, s[{SRD_A}:{SRD_A+3}], 0 offen
buffer_load_dwordx4 v[12:15], v33, s[{SRD_A}:{SRD_A+3}], 0 offen offset:16
buffer_load_dwordx4 v[16:19], v33, s[{SRD_A}:{SRD_A+3}], 0 offen offset:32
buffer_load_dwordx4 v[20:23], v33, s[{SRD_A}:{SRD_A+3}], 0 offen offset:48
v_lshl_add_u32 v34, v3, 6, v32
v_lshl_add_u32 v34, v4, 4, v34
s_lshr_b32 s{S_A}, s{S_I}, 1
s_lshl_b32 s{S_B}, s{S_A}, 8
buffer_load_dwordx4 v[24:27], v34, s[{SRD_A}:{SRD_A+3}], s{S_B} offen
v_mov_b32 v35, 0
buffer_load_dword v28, v35, s[{SRD_WS}:{SRD_WS+3}], 0 offen sc1
v_lshrrev_b32 v36, 3, v0
v_and_b32 v36, 3, v36
v_xor_b32 v36, s{S_W}, v36
v_lshlrev_b32 v36, 5, v36
v_lshl_add_u32 v36, v7, 7, v36
v_lshl_add_u32 v36, v2, 3, v36
v_add_u32 v36, {L_WQ}, v36
v_lshlrev_b32 v37, 4, v2
v_lshl_add_u32 v37, v4, 6, v37
s_lshl_b32 s{S_B}, s{S_H}, 13
s_lshl_b32 s{S_C}, s{S_A}, 11
s_add_u32 s{S_B}, s{S_B}, s{S_C}
s_and_b32 s{S_C}, s{S_I}, 1
s_lshl_b32 s{S_C}, s{S_C}, 10
s_add_u32 s{S_B}, s{S_B}, s{S_C}
s_lshl_b32 s{S_C}, s{S_W}, 8
s_add_u32 s{S_B}, s{S_B}, s{S_C}
s_add_u32 s{S_B}, s{S_B}, {H1}
s_mov_b32 s{S_D}, 0x3f803f80
v_mov_b32 v30, 0
v_mov_b32 v31, 0
s_waitcnt vmcnt(2)
""")
        for k in range(16):
            a(f"v_dot2_f32_bf16 v30, v{8+k}, s{S_D}, v30")
            a(f"v_dot2_f32_bf16 v31, v{8+k}, v{8+k}, v31")
        self.allred2("v_add_f32", 30, 31, 32, 33, [4, 8, 16, 32])
        self.ln_stats(30, 31, 32, 33, 34)
        a("s_waitcnt vmcnt(0)")
        for k in range(4):
            a(f"v_lshlrev_b32 v8, 16, v{24+k}\nv_and_b32 v9, 0xffff0000, v{24+k}")
            self.ln_norm_pair(24 + k, 8, 9, 32, 33)
        for s in range(4):
            m = (S_M0, S_M1, S_M2, S_M3)[s]
            for k in range(4):
                a(f"v_cndmask_b32 v{8+4*s+k}, 0, v{24+k}, s[{m}:{m+1}]")
        a(f"""
v_readfirstlane_b32 s{S_TAG}, v28
s_add_u32 s{S_G}, s{S_TAG}, 1
s_mul_i32 s{S_TAG}, s{S_G}, 0x9e3779b1
v_mov_b32 v61, s{S_TAG}
v_mov_b32 v63, s{S_TAG}
""")
        self.stamp(1)
        self.lds_wait1(F_LD, 16, 1, 30)
        for s in range(4):
            for e in range(2):
                r = 40 + 4 * s + 2 * e
                a(f"ds_read_b64_tr_b16 v[{r}:{r+1}], v36 offset:{s*4096+e*2048}")
        for s in range(4):
            a(f"s_waitcnt lgkmcnt({6-2*s})")
            c = "0" if s == 0 else "v[56:59]"
            a(f"v_mfma_f32_16x16x32_bf16 v[56:59], v[{40+4*s}:{43+4*s}], v[{8+4*s}:{11+4*s}], {c}")
        for st in (4, 8):
            for k in range(4):
                a(f"v_add_f32_dpp v{56+k}, v{56+k}, v{56+k} row_ror:{st} row_mask:0xf bank_mask:0xf")
        a(f"""
v_cvt_pk_bf16_f32 v60, v56, v57
v_cvt_pk_bf16_f32 v62, v58, v59
s_mov_b64 exec, s[{S_M0}:{S_M0+1}]
buffer_store_dwordx4 v[60:63], v37, s[{SRD_WS}:{SRD_WS+3}], s{S_B} offen sc1
s_mov_b64 exec, -1
""")
        self.stamp(2)

    def p3(self):
        a = self.a
        SA, PA, ACC = 64, 128, 192
        a(f"""
v_lshlrev_b32 v24, 2, v2
v_or_b32 v24, v24, v3
v_lshlrev_b32 v24, 4, v24
v_lshl_add_u32 v24, v4, 8, v24
v_lshl_add_u32 v24, v5, 10, v24
s_lshl_b32 s{S_T0}, s{S_W}, 14
v_add_u32 v24, s{S_T0}, v24
v_lshrrev_b32 v25, 5, v0
v_and_b32 v26, 1, v4
v_xor_b32 v26, v26, v25
v_lshlrev_b32 v26, 1, v26
v_lshrrev_b32 v27, 1, v2
v_or_b32 v26, v26, v27
v_lshl_or_b32 v26, v3, 2, v26
v_lshlrev_b32 v26, 4, v26
v_and_b32 v27, 1, v2
v_lshl_add_u32 v26, v27, 3, v26
v_lshl_add_u32 v27, v25, 3, v3
v_lshl_add_u32 v26, v27, 10, v26
s_lshl_b32 s{S_T0}, s{S_W}, 8
v_add_u32 v26, s{S_T0}, v26
v_lshlrev_b32 v28, 4, v5
v_lshl_add_u32 v28, v4, 8, v28
v_lshl_add_u32 v28, v5, 10, v28
v_add_u32 v28, {L_QIMG}, v28
""")
        for s in range(16):
            a(f"v_xor_b32 v{8+s}, {s*16}, v28")
        a(f"""
v_lshlrev_b32 v7, 4, v0
s_and_b32 s{S_T0}, s{S_W}, 1
s_lshl_b32 s{S_T0}, s{S_T0}, 7
v_xor_b32 v30, s{S_T0}, v7
s_lshr_b32 s{S_A}, s{S_X}, 1
s_lshl_b32 s{S_A}, s{S_A}, 15
s_lshl_b32 s{S_B}, s{S_W}, 13
s_add_u32 s{S_A}, s{S_A}, s{S_B}
s_add_u32 s{S_A}, s{S_A}, {H2}
s_add_u32 s{S_B}, s{S_B}, {L_QIMG}
v_add_u32 v31, s{S_B}, v7
""")
        for i in range(8):
            a(f"v_xor_b32 v{32+i}, {i*16}, v30")
            if i: a(f"v_add_u32 v{32+i}, {i*1024}, v{32+i}")
        self.lds_wait1(F_LD, 96, 1, 40, sleep=1)
        self.stamp(3)
        for s in range(16):
            a(f"v_xor_b32 v40, {s*16}, v24")
            a(f"ds_read_b128 v[{SA+4*s}:{SA+4*s+3}], v40")
            if s % 8 == 7: a("s_waitcnt lgkmcnt(0)")
        for t in range(4):
            for e in range(2):
                a(f"v_xor_b32 v40, {(t<<6)|(e<<4)}, v26")
                for kap in range(4):
                    r = PA + (t * 4 + kap) * 4 + 2 * e
                    a(f"ds_read_b64_tr_b16 v[{r}:{r+1}], v40 offset:{kap*16384+e*4096}")
            a("s_waitcnt lgkmcnt(0)")
        self.lds_set(F_CKVFREE, 1, 6, 40)
        self.stamp(4)
        self.lds_wait1(F_GOQ, 1, 1, 40)
        a(f"s_sub_u32 s{S_MODE}, s{S_T0}, 1")
        self.stamp(5)
        lp, dn = self.L("PQ"), self.L("PD")
        a(f"{lp}:\ns_mov_b32 m0, s{S_B}")
        for i in range(8):
            a(f"buffer_load_dwordx4 v{32+i}, s[{SRD_WS}:{SRD_WS+3}], s{S_A} offen sc1 lds")
            if i < 7: a("s_add_u32 m0, m0, 1024")
        a("s_waitcnt vmcnt(0)")
        for i in range(8):
            a(f"ds_read_b128 v[{ACC+4*i}:{ACC+4*i+3}], v31 offset:{i*1024}")
        a("s_waitcnt lgkmcnt(0)")
        self.chk_sentinel(range(ACC, ACC + 32), 40)
        a(f"s_cbranch_vccz {dn}")
        self.bound()
        a(f"s_sleep 2\ns_branch {lp}\n{dn}:")
        self.lds_set(F_QOK, 1, 6, 40)
        self.stamp(6)
        self.lds_wait4(F_QOK, 1, 1, 40)
        NB = 14
        seq = [(s, T) for s in range(16) for T in range(2)]
        def rd(k):
            s, T = seq[k]
            r = ACC + 4 * (k % 16)
            a(f"ds_read_b128 v[{r}:{r+3}], v{8+s} offset:{T*16384}")
        for k in range(NB): rd(k)
        for k in range(32):
            s, T = seq[k]
            out = min(NB, 32 - k) - 1
            a(f"s_waitcnt lgkmcnt({out})")
            r = ACC + 4 * (k % 16)
            d = 44 + 4 * T
            c = "0" if s == 0 else f"v[{d}:{d+3}]"
            a(f"v_mfma_f32_16x16x32_bf16 v[{d}:{d+3}], v[{SA+4*s}:{SA+4*s+3}], v[{r}:{r+3}], {c}")
            if k + NB < 32: rd(k + NB)
        self.stamp(7)
        a(f"""
s_mov_b32 s{S_C}, 0x{f2u(SCALE_LOG2E):08x}
v_max3_f32 v52, v44, v45, v46
v_max3_f32 v53, v48, v49, v50
v_max_f32 v52, v52, v47
v_max_f32 v53, v53, v51
""")
        self.allred2("v_max_f32", 52, 53, 54, 55, [16, 32])
        a(f"""
s_mov_b32 s{S_EX}, 0xffff0000
s_mov_b32 s{S_EX+1}, 0xffff0000
v_cndmask_b32 v52, v52, v53, s[{S_EX}:{S_EX+1}]
v_mul_f32 v52, s{S_C}, v52
v_and_b32 v54, 31, v0
v_lshl_add_u32 v55, v54, 4, v6
ds_write_b32 v55, v52 offset:{O_MX}
""")
        self.lds_set(F_MXF, 1, 6, 53)
        a(f"""
v_lshl_add_u32 v55, v5, 4, v1
v_lshl_add_u32 v54, v54, 4, v1
""")
        self.lds_wait4(F_MXF, 1, 1, 40, extra=f"""ds_read_b128 v[56:59], v55 offset:{O_MX}
ds_read_b128 v[60:63], v55 offset:{O_MX+256}
ds_read_b128 v[8:11], v54 offset:{O_MX}""")
        a(f"""
v_max3_f32 v56, v56, v57, v58
v_max3_f32 v60, v60, v61, v62
v_max_f32 v56, v56, v59
v_max_f32 v60, v60, v63
""")
        for k in range(4):
            a(f"v_fma_f32 v{44+k}, v{44+k}, s{S_C}, -v56")
            a(f"v_fma_f32 v{48+k}, v{48+k}, s{S_C}, -v60")
        for k in range(8):
            a(f"v_exp_f32 v{44+k}, v{44+k}")
        a(f"""
v_lshrrev_b32 v57, 5, v0
v_lshlrev_b32 v57, 9, v57
v_and_b32 v58, 1, v4
v_lshl_add_u32 v57, v58, 3, v57
v_add_u32 v57, v57, v55
s_lshl_b32 s{S_T0}, s{S_W}, 10
v_add_u32 v57, s{S_T0}, v57
v_cvt_pk_bf16_f32 v44, v44, v45
v_cvt_pk_bf16_f32 v45, v46, v47
v_cvt_pk_bf16_f32 v46, v48, v49
v_cvt_pk_bf16_f32 v47, v50, v51
ds_write_b64 v57, v[44:45] offset:{O_PX}
ds_write_b64 v57, v[46:47] offset:{O_PX+256}
""")
        self.lds_set(F_PF, 1, 6, 53)
        a(f"""
v_add_u32 v58, v7, v1
v_max3_f32 v8, v8, v9, v10
v_max_f32 v8, v8, v11
""")
        self.lds_wait4(F_PF, 1, 1, 40, extra="\n".join(f"ds_read_b128 v[{44+4*k}:{47+4*k}], v58 offset:{O_PX+k*1024}" for k in range(4)).replace("v[56:59]", "v[12:15]"))
        self.stamp(8)
        PB = [44, 48, 52, 12]
        a(f"""
s_lshl_b32 s{S_A}, s{S_X}, 5
s_add_u32 s{S_A}, s{S_A}, s{S_J}
s_lshl_b32 s{S_A}, s{S_A}, 15
s_lshl_b32 s{S_B}, s{S_W}, 13
s_add_u32 s{S_A}, s{S_A}, s{S_B}
s_add_u32 s{S_A}, s{S_A}, {OPART}
s_mov_b32 s{S_D}, 0x3f803f80
v_mov_b32 v9, 0
""")
        for t in range(4):
            d = ACC + 16 * t
            for kap in range(4):
                r = PA + (t * 4 + kap) * 4
                c = "0" if kap == 0 else f"v[{d}:{d+15}]"
                a(f"v_mfma_f32_32x32x16_bf16 v[{d}:{d+15}], v[{r}:{r+3}], v[{PB[kap]}:{PB[kap]+3}], {c}")
                if t == 0:
                    for k in range(4):
                        a(f"v_dot2_f32_bf16 v9, v{PB[kap]+k}, s{S_D}, v9")
            if t >= 1:
                self.pv_pack(t - 1, ACC)
        self.pv_pack(3, ACC)
        self.allred("v_add_f32", 9, 10, [32])
        a(f"""
v_min_u32 v8, -2, v8
v_min_u32 v9, -2, v9
s_lshl_b32 s{S_A}, s{S_X}, 15
s_add_u32 s{S_A}, s{S_A}, s{S_B}
s_lshl_b32 s{S_C}, s{S_J}, 8
s_add_u32 s{S_A}, s{S_A}, s{S_C}
s_add_u32 s{S_A}, s{S_A}, {STATS}
v_lshlrev_b32 v10, 3, v0
""")
        self.stamp(9)
        a("s_waitcnt vmcnt(0)\ns_mov_b32 exec_hi, 0")
        self.store_l([f"buffer_store_dwordx2 v[8:9], v10, s[{SRD_WS}:{SRD_WS+3}], s{S_A} offen"])
        a("s_mov_b64 exec, -1")
        self.stamp(10)

    def pv_pack(self, t, ACC):
        a = self.a
        d = ACC + 16 * t
        o = 64 + 8 * t
        for k in range(8):
            a(f"v_cvt_pk_bf16_f32 v{o+k}, v{d+2*k}, v{d+2*k+1}")
        st = []
        for u in range(2):
            off = t * 2048 + u * 1024
            if off < 4096:
                st.append(f"buffer_store_dwordx4 v[{o+4*u}:{o+4*u+3}], v7, s[{SRD_WS}:{SRD_WS+3}], s{S_A} offen offset:{off}")
            else:
                st.append(f"buffer_store_dwordx4 v[{o+4*u}:{o+4*u+3}], v7, s[{SRD_WS}:{SRD_WS+3}], s{S_E} offen offset:{off-4096}")
        if t == 2: a(f"s_add_u32 s{S_E}, s{S_A}, 4096")
        self.store_l(st)

    def pc(self):
        a = self.a
        a(f"""
s_and_b32 s{S_A}, s{S_J}, 3            ; o
s_lshr_b32 s{S_B}, s{S_J}, 2           ; cr
s_lshr_b32 s{S_C}, s{S_B}, 1           ; wsrc
s_lshl_b32 s{S_D}, s{S_X}, 15
s_lshl_b32 s{S_T0}, s{S_C}, 13
s_add_u32 s{S_D}, s{S_D}, s{S_T0}
s_lshl_b32 s{S_T1}, s{S_W}, 11
s_add_u32 s{S_D}, s{S_D}, s{S_T1}
s_lshl_b32 s{S_T1}, s{S_A}, 6
s_add_u32 s{S_D}, s{S_D}, s{S_T1}
s_add_u32 s{S_D}, s{S_D}, {STATS}
v_and_b32 v8, 7, v0
v_lshlrev_b32 v9, 3, v8
s_lshl_b32 s{S_E}, s{S_X}, 20
s_lshl_b32 s{S_T1}, s{S_W}, 18
s_add_u32 s{S_E}, s{S_E}, s{S_T1}
s_add_u32 s{S_E}, s{S_E}, s{S_T0}
s_and_b32 s{S_T1}, s{S_B}, 1
s_lshl_b32 s{S_T1}, s{S_T1}, 12
s_add_u32 s{S_E}, s{S_E}, s{S_T1}
s_lshl_b32 s{S_T1}, s{S_A}, 7
s_add_u32 s{S_E}, s{S_E}, s{S_T1}
s_add_u32 s{S_E}, s{S_E}, {OPART}
v_lshrrev_b32 v10, 3, v0
v_lshlrev_b32 v11, 9, v10
v_lshl_add_u32 v11, v8, 4, v11
s_waitcnt vmcnt(0)
""")
        lp, dn = self.L("PC"), self.L("PD")
        a(f"{lp}:")
        for i in range(8):
            a(f"buffer_load_dwordx2 v[{16+2*i}:{17+2*i}], v9, s[{SRD_WS}:{SRD_WS+3}], s{S_D} offen offset:{i*256} sc1")
        a("s_waitcnt vmcnt(0)")
        self.chk_sentinel(range(16, 32), 12)
        a(f"s_cbranch_vccz {dn}")
        self.bound()
        a(f"s_sleep 1\ns_branch {lp}\n{dn}:")
        for i in range(8):
            a(f"buffer_load_dwordx4 v[{64+4*i}:{67+4*i}], v11, s[{SRD_WS}:{SRD_WS+3}], s{S_E} offen sc1")
            if i < 7: a(f"s_add_u32 s{S_E}, s{S_E}, 32768")
        self.stamp(11)
        a("""
v_max3_f32 v32, v16, v18, v20
v_max3_f32 v32, v32, v22, v24
v_max3_f32 v32, v32, v26, v28
v_max_f32 v32, v32, v30
""")
        for i in range(8):
            a(f"v_sub_f32 v{16+2*i}, v{16+2*i}, v32")
        for i in range(8):
            a(f"v_exp_f32 v{16+2*i}, v{16+2*i}")
        a("v_mul_f32 v33, v16, v17")
        for i in range(1, 8):
            a(f"v_fmac_f32 v33, v{16+2*i}, v{17+2*i}")
        a(f"""
s_lshl_b32 s{S_T0}, s{S_W}, 6
v_add_u32 v34, v9, v1
v_add_u32 v35, s{S_T0}, v34
ds_write_b64 v35, v[32:33] offset:{O_CS}
""")
        for i in range(8):
            a(f"s_waitcnt vmcnt({7-i})")
            for k in range(4):
                r = 64 + 4 * i + k
                a(f"v_lshlrev_b32 v36, 16, v{r}\nv_and_b32 v37, 0xffff0000, v{r}")
                if i == 0:
                    a(f"v_mul_f32 v{40+2*k}, v36, v16\nv_mul_f32 v{41+2*k}, v37, v16")
                else:
                    a(f"v_fmac_f32 v{40+2*k}, v36, v{16+2*i}\nv_fmac_f32 v{41+2*k}, v37, v{16+2*i}")
        a(f"""
s_lshl_b32 s{S_T0}, s{S_W}, 11
s_add_u32 s{S_T0}, s{S_T0}, {L_CX}
v_add_u32 v36, s{S_T0}, v7
ds_write_b128 v36, v[40:43]
ds_write_b128 v36, v[44:47] offset:1024
""")
        self.lds_set(F_CXF, 1, 6, 37)
        skip = self.L("CS")
        a(f"s_cmp_lg_u32 s{S_W}, 0\ns_cbranch_scc1 {skip}")
        a(f"""
v_lshl_add_u32 v36, v8, 3, v10
v_lshlrev_b32 v36, 4, v36
v_add_u32 v36, {L_CX}, v36
v_lshl_add_u32 v37, v10, 3, v1
s_lshl_b32 s{S_D}, s{S_X}, 15
s_lshl_b32 s{S_T0}, s{S_A}, 13
s_add_u32 s{S_D}, s{S_D}, s{S_T0}
s_lshl_b32 s{S_T0}, s{S_B}, 7
s_add_u32 s{S_D}, s{S_D}, s{S_T0}
s_add_u32 s{S_D}, s{S_D}, {OC}
v_lshlrev_b32 v38, 10, v10
v_lshl_add_u32 v38, v8, 4, v38
s_lshl_b32 s{S_E}, s{S_X}, 12
s_lshl_b32 s{S_T1}, s{S_A}, 10
s_add_u32 s{S_E}, s{S_E}, s{S_T1}
s_add_u32 s{S_E}, s{S_E}, s{S_T0}
s_add_u32 s{S_E}, s{S_E}, {OCS}
v_lshlrev_b32 v39, 3, v10
""")
        ex = []
        for v in range(4):
            ex.append(f"ds_read_b64 v[{16+2*v}:{17+2*v}], v37 offset:{O_CS+64*v}")
            ex.append(f"ds_read_b128 v[{64+8*v}:{67+8*v}], v36 offset:{v*2048}")
            ex.append(f"ds_read_b128 v[{68+8*v}:{71+8*v}], v36 offset:{v*2048+1024}")
        self.lds_wait4(F_CXF, 1, 1, 12, extra="\n".join(ex))
        a("""
v_max3_f32 v32, v16, v18, v20
v_max_f32 v32, v32, v22
""")
        for v in range(4): a(f"v_sub_f32 v{16+2*v}, v{16+2*v}, v32")
        for v in range(4): a(f"v_exp_f32 v{16+2*v}, v{16+2*v}")
        a("v_mul_f32 v33, v16, v17")
        for v in range(1, 4): a(f"v_fmac_f32 v33, v{16+2*v}, v{17+2*v}")
        for k in range(8): a(f"v_mul_f32 v{64+k}, v{64+k}, v16")
        for v in range(1, 4):
            for k in range(8): a(f"v_fmac_f32 v{64+k}, v{64+8*v+k}, v{16+2*v}")
        for k in range(4):
            a(f"v_cvt_pk_bf16_f32 v{40+k}, v{64+2*k}, v{65+2*k}\nv_min_u32 v{40+k}, -2, v{40+k}")
        a(f"""
v_min_u32 v32, -2, v32
v_min_u32 v33, -2, v33
buffer_store_dwordx4 v[40:43], v38, s[{SRD_WS}:{SRD_WS+3}], s{S_D} offen sc1
buffer_store_dwordx2 v[32:33], v39, s[{SRD_WS}:{SRD_WS+3}], s{S_E} offen sc1
{skip}:
""")
        self.stamp(12)

    def tile128_addr(self, vd, base_expr_sgpr):
        self.a(f"""
v_lshrrev_b32 v{vd}, 3, v0
v_and_b32 v{vd}, 3, v{vd}
v_lshlrev_b32 v{vd}, 5, v{vd}
v_lshrrev_b32 v{vd+1}, 2, v0
v_lshl_add_u32 v{vd}, v{vd+1}, 7, v{vd}
v_lshl_add_u32 v{vd}, v2, 3, v{vd}
v_add_u32 v{vd}, s{base_expr_sgpr}, v{vd}
""")

    def role_reduce_write(self, D):
        a = self.a
        a(f"""
v_lshlrev_b32 v10, 7, v4
v_lshl_add_u32 v10, v5, 4, v10
s_lshl_b32 s{S_T0}, s{S_W}, 11
s_add_u32 s{S_T0}, s{S_T0}, {L_RX}
v_add_u32 v10, s{S_T0}, v10
s_mov_b32 s{S_EX}, 0x00ff00ff
s_mov_b32 s{S_EX+1}, 0x00ff00ff
s_mov_b64 exec, s[{S_EX}:{S_EX+1}]
""")
        for t in range(4):
            a(f"ds_write_b128 v10, v[{D+4*t}:{D+4*t+3}] offset:{t*512}")
        a("s_mov_b64 exec, -1")
        self.lds_set(F_RXF, 1, 6, 11)

    def p4(self):
        a = self.a
        a("L_p4:")
        a(f"""
s_lshr_b32 s{S_A}, s{S_J}, 2            ; hx
s_lshl_b32 s{S_H}, s{S_X}, 2
s_add_u32 s{S_H}, s{S_H}, s{S_A}
s_lshr_b32 s{S_B}, s{S_J}, 1
s_and_b32 s{S_B}, s{S_B}, 1             ; chalf
s_lshl_b32 s{S_T1}, s{S_W}, 13
s_add_u32 s{S_T1}, s{S_T1}, {L_ROLE}
""")
        self.tile128_addr(8, S_T1)
        a(f"""
v_and_b32 v12, 7, v0
v_lshlrev_b32 v13, 15, v12
v_lshl_add_u32 v13, v4, 4, v13
s_lshl_b32 s{S_C}, s{S_H}, 10
s_lshl_b32 s{S_T0}, s{S_B}, 9
s_add_u32 s{S_C}, s{S_C}, s{S_T0}
s_lshl_b32 s{S_T1}, s{S_W}, 7
s_add_u32 s{S_C}, s{S_C}, s{S_T1}
s_add_u32 s{S_C}, s{S_C}, {OC}
v_lshlrev_b32 v14, 13, v4
s_lshr_b32 s{S_D}, s{S_H}, 3
s_lshl_b32 s{S_D}, s{S_D}, 10
s_add_u32 s{S_D}, s{S_D}, s{S_T0}
s_and_b32 s{S_T1}, s{S_H}, 7
s_lshl_b32 s{S_T1}, s{S_T1}, 3
s_add_u32 s{S_D}, s{S_D}, s{S_T1}
s_add_u32 s{S_D}, s{S_D}, {OCS}
s_add_u32 s{S_E}, s{S_D}, 4096
""")
        self.lds_wait1(F_LD, 200, 1, 15, sleep=1)
        for t in range(4):
            a(f"v_xor_b32 v15, {t<<5}, v8")
            for s in range(2):
                for e in range(2):
                    r = 64 + (t * 2 + s) * 4 + 2 * e
                    a(f"ds_read_b64_tr_b16 v[{r}:{r+1}], v15 offset:{s*4096+e*2048}")
        lp, dn = self.L("P4"), self.L("PD")
        a(f"""
s_waitcnt vmcnt(0)
{lp}:
buffer_load_dwordx4 v[16:19], v13, s[{SRD_WS}:{SRD_WS+3}], s{S_C} offen sc1
buffer_load_dwordx4 v[20:23], v13, s[{SRD_WS}:{SRD_WS+3}], s{S_C} offen offset:64 sc1
buffer_load_dwordx2 v[24:25], v14, s[{SRD_WS}:{SRD_WS+3}], s{S_D} offen sc1
buffer_load_dwordx2 v[26:27], v14, s[{SRD_WS}:{SRD_WS+3}], s{S_E} offen sc1
s_waitcnt vmcnt(0)
""")
        self.chk_sentinel(range(16, 28), 15)
        a(f"s_cbranch_vccz {dn}")
        self.bound()
        a(f"s_sleep 1\ns_branch {lp}\n{dn}:\ns_waitcnt lgkmcnt(0)")
        for s in range(2):
            for t in range(4):
                r = 64 + (t * 2 + s) * 4
                d = 32 + 4 * t
                c = "0" if s == 0 else f"v[{d}:{d+3}]"
                a(f"v_mfma_f32_16x16x32_bf16 v[{d}:{d+3}], v[{r}:{r+3}], v[{16+4*s}:{19+4*s}], {c}")
        self.role_reduce_write(32)
        a(f"s_cmp_lg_u32 s{S_W}, 0\ns_cbranch_scc1 L_cend")
        a(f"""
v_lshlrev_b32 v10, 7, v5
v_lshl_add_u32 v10, v4, 5, v10
v_add_u32 v10, {L_RX}, v10
v_max_f32 v28, v24, v26
v_sub_f32 v24, v24, v28
v_sub_f32 v26, v26, v28
v_exp_f32 v24, v24
v_exp_f32 v26, v26
v_mul_f32 v28, v24, v25
v_fmac_f32 v28, v26, v27
v_rcp_f32 v28, v28
v_mul_f32 v24, v24, v28
v_mul_f32 v26, v26, v28
v_lshlrev_b32 v11, 10, v4
v_lshl_add_u32 v11, v5, 3, v11
s_lshl_b32 s{S_C}, s{S_X}, 13
s_lshl_b32 s{S_T0}, s{S_B}, 12
s_add_u32 s{S_C}, s{S_C}, s{S_T0}
s_lshl_b32 s{S_T0}, s{S_A}, 8
s_add_u32 s{S_C}, s{S_C}, s{S_T0}
s_and_b32 s{S_T0}, s{S_J}, 1
s_lshl_b32 s{S_T0}, s{S_T0}, 7
s_add_u32 s{S_C}, s{S_C}, s{S_T0}
s_add_u32 s{S_C}, s{S_C}, {CT}
""")
        ex = []
        for v in range(4):
            ex.append(f"ds_read_b128 v[{64+8*v}:{67+8*v}], v10 offset:{v*2048}")
            ex.append(f"ds_read_b128 v[{68+8*v}:{71+8*v}], v10 offset:{v*2048+16}")
        self.lds_wait4(F_RXF, 1, 1, 12, extra="\n".join(ex))
        for k in range(8):
            a(f"v_add_f32 v{64+k}, v{64+k}, v{72+k}\nv_add_f32 v{80+k}, v{80+k}, v{88+k}")
        for k in range(8):
            a(f"v_add_f32 v{64+k}, v{64+k}, v{80+k}")
        for k in range(4):
            a(f"v_mul_f32 v{64+k}, v{64+k}, v24\nv_fmac_f32 v{64+k}, v{68+k}, v26")
        a("""
v_cvt_pk_bf16_f32 v16, v64, v65
v_cvt_pk_bf16_f32 v17, v66, v67
v_min_u32 v16, -2, v16
v_min_u32 v17, -2, v17
""")
        self.store_l([f"buffer_store_dwordx2 v[16:17], v11, s[{SRD_WS}:{SRD_WS+3}], s{S_C} offen"])
        self.stamp(13)
        a(f"s_cmp_lt_u32 s{S_J}, 2\ns_cbranch_scc1 L_final\ns_branch L_cend")

    def p5(self):
        a = self.a
        a("L_p5:")
        a(f"""
s_lshl_b32 s{S_T1}, s{S_W}, 14
s_add_u32 s{S_T1}, s{S_T1}, {L_ROLE}
s_cmp_eq_u32 s{S_W}, 3
s_cselect_b32 s{S_T1}, {L_CKV}, s{S_T1}
""")
        self.tile128_addr(8, S_T1)
        a(f"""
v_and_b32 v12, 7, v0
v_lshlrev_b32 v13, 10, v12
v_lshl_add_u32 v13, v4, 4, v13
s_lshl_b32 s{S_C}, s{S_X}, 13
s_lshl_b32 s{S_T0}, s{S_W}, 8
s_add_u32 s{S_C}, s{S_C}, s{S_T0}
s_add_u32 s{S_C}, s{S_C}, {CT}
""")
        self.lds_wait1(F_LD, 200, 1, 15, sleep=1)
        for t in range(4):
            a(f"v_xor_b32 v15, {t<<5}, v8")
            for s in range(4):
                for e in range(2):
                    r = 64 + (t * 4 + s) * 4 + 2 * e
                    a(f"ds_read_b64_tr_b16 v[{r}:{r+1}], v15 offset:{s*4096+e*2048}")
            a("s_waitcnt lgkmcnt(0)")
        lp, dn = self.L("P5"), self.L("PD")
        a(f"s_waitcnt vmcnt(0)\n{lp}:")
        for s in range(4):
            a(f"buffer_load_dwordx4 v[{16+4*s}:{19+4*s}], v13, s[{SRD_WS}:{SRD_WS+3}], s{S_C} offen offset:{s*64} sc1")
        a("s_waitcnt vmcnt(0)")
        self.chk_sentinel(range(16, 32), 15)
        a(f"s_cbranch_vccz {dn}")
        self.bound()
        a(f"s_sleep 1\ns_branch {lp}\n{dn}:")
        for s in range(4):
            for t in range(4):
                r = 64 + (t * 4 + s) * 4
                d = 32 + 4 * t
                c = "0" if s == 0 else f"v[{d}:{d+3}]"
                a(f"v_mfma_f32_16x16x32_bf16 v[{d}:{d+3}], v[{r}:{r+3}], v[{16+4*s}:{19+4*s}], {c}")
        self.role_reduce_write(32)
        a(f"s_cmp_lg_u32 s{S_W}, 0\ns_cbranch_scc1 L_cend")
        a(f"""
v_lshlrev_b32 v10, 7, v5
v_lshl_add_u32 v10, v4, 4, v10
v_add_u32 v10, {L_RX}, v10
v_lshlrev_b32 v11, 10, v4
v_lshl_add_u32 v11, v5, 3, v11
s_lshl_b32 s{S_C}, s{S_X}, 12
s_lshl_b32 s{S_T0}, s{S_I}, 7
s_add_u32 s{S_C}, s{S_C}, s{S_T0}
s_add_u32 s{S_C}, s{S_C}, {AT}
""")
        ex = []
        for v in range(4):
            ex.append(f"ds_read_b128 v[{64+8*v}:{67+8*v}], v10 offset:{v*2048}")
            ex.append(f"ds_read_b128 v[{68+8*v}:{71+8*v}], v10 offset:{v*2048+64}")
        self.lds_wait4(F_RXF, 1, 1, 12, extra="\n".join(ex))
        for k in range(8):
            a(f"v_add_f32 v{64+k}, v{64+k}, v{72+k}\nv_add_f32 v{80+k}, v{80+k}, v{88+k}")
        for k in range(8):
            a(f"v_add_f32 v{64+k}, v{64+k}, v{80+k}")
        for k in range(4):
            a(f"v_add_f32 v{64+k}, v{64+k}, v{68+k}")
        a(f"""
v_cvt_pk_bf16_f32 v16, v64, v65
v_cvt_pk_bf16_f32 v17, v66, v67
v_min_u32 v16, -2, v16
v_min_u32 v17, -2, v17
buffer_store_dwordx2 v[16:17], v11, s[{SRD_WS}:{SRD_WS+3}], s{S_C} offen sc1
""")
        self.stamp(13)
        a("s_branch L_cend")

    def ident(self, lo, hi, t):
        a = self.a
        a(f"""
v_and_b32 v{t}, 1, v5
v_lshlrev_b32 v{t}, 4, v{t}
v_mov_b32 v{t+1}, 0x3f80
v_lshlrev_b32 v{t}, v{t}, v{t+1}
v_lshrrev_b32 v{t+1}, 1, v5
""")
        for k in range(4):
            a(f"v_cmp_eq_u32 vcc, {k}, v{t+1}\nv_cndmask_b32 v{lo+k}, 0, v{t}, vcc")
        if hi is not None:
            for k in range(4):
                a(f"v_cmp_eq_u32 vcc, {4+k}, v{t+1}\nv_cndmask_b32 v{hi+k}, 0, v{t}, vcc")

    def mlp(self):
        a = self.a
        a("L_mlp:")
        a(srd(SRD_A, P['x'], SIZES['x']))
        a(f"""
v_lshrrev_b32 v8, 5, v0
v_lshlrev_b32 v8, 8, v8
v_lshl_add_u32 v8, v5, 4, v8
v_and_b32 v9, 1, v4
v_lshl_add_u32 v8, v9, 3, v8
s_lshl_b32 s{S_A}, s{S_W}, 10
buffer_load_dwordx2 v[60:61], v8, s[{SRD_A}:{SRD_A+3}], s{S_A} offen
buffer_load_dwordx2 v[62:63], v8, s[{SRD_A}:{SRD_A+3}], s{S_A} offen offset:512
s_mul_i32 s{S_T0}, s{S_W}, {XN_STRIDE}
s_add_u32 s{S_T0}, s{S_T0}, {L_XN}
v_add_u32 v8, s{S_T0}, v8
v_lshlrev_b32 v9, 12, v4
v_lshl_add_u32 v9, v5, 4, v9
s_add_u32 s{S_A}, s{S_A}, {AT}
s_add_u32 s{S_B}, s{S_A}, 16384
s_and_b32 s{S_T0}, s{S_W}, 1
v_and_b32 v10, 1, v4
v_xor_b32 v10, s{S_T0}, v10
v_lshlrev_b32 v10, 5, v10
v_lshrrev_b32 v11, 2, v0
v_lshl_add_u32 v10, v11, 6, v10
v_lshl_add_u32 v10, v2, 3, v10
s_cmp_lt_u32 s{S_W}, 2
s_cselect_b32 s{S_T0}, {L_ROLE}, {L_CKV}
v_add_u32 v10, s{S_T0}, v10
v_and_b32 v12, 7, v11
v_lshlrev_b32 v12, 5, v12
v_lshl_add_u32 v12, v11, 10, v12
v_lshl_add_u32 v12, v2, 3, v12
s_lshl_b32 s{S_T0}, s{S_W}, 8
s_add_u32 s{S_T0}, s{S_T0}, {L_CKV + 0x8000}
v_add_u32 v12, s{S_T0}, v12
s_movk_i32 s{S_T0}, {XN_STRIDE}
v_mul_lo_u32 v13, v2, s{S_T0}
v_lshl_add_u32 v13, v4, 4, v13
v_add_u32 v13, {L_XN}, v13
""")
        self.ident(48, 52, 14)
        self.lds_wait1(F_LD, 200, 1, 15, sleep=1)
        for s in range(16):
            for e in range(2):
                r = 128 + 4 * s + 2 * e
                a(f"ds_read_b64_tr_b16 v[{r}:{r+1}], v10 offset:{s*2048+e*1024}")
            if s % 4 == 3: a("s_waitcnt lgkmcnt(0)")
        for tau in range(8):
            a(f"v_xor_b32 v15, {tau<<5}, v12")
            for e in range(2):
                r = 192 + 4 * tau + 2 * e
                a(f"ds_read_b64_tr_b16 v[{r}:{r+1}], v15 offset:{e*16384}")
            if tau % 4 == 3: a("s_waitcnt lgkmcnt(0)")
        lp, dn = self.L("P6"), self.L("PD")
        a(f"s_waitcnt vmcnt(0)\n{lp}:")
        for q in range(4):
            for i in range(2):
                r = 16 + (q * 2 + i) * 4
                a(f"buffer_load_dwordx4 v[{r}:{r+3}], v9, s[{SRD_WS}:{SRD_WS+3}], s{S_A if i == 0 else S_B} offen offset:{q*256} sc1")
        a("s_waitcnt vmcnt(0)")
        self.chk_sentinel(range(16, 48), 15)
        a(f"s_cbranch_vccz {dn}")
        self.bound()
        a(f"s_sleep 2\ns_branch {lp}\n{dn}:")
        self.stamp(13)
        for qq in range(2):
            for i in range(2):
                for hb in range(2):
                    q = hb * 2 + qq
                    r = 16 + (q * 2 + i) * 4
                    d = 64 + 4 * hb
                    A = 48 if qq == 0 else 52
                    c = "0" if (qq == 0 and i == 0) else f"v[{d}:{d+3}]"
                    a(f"v_mfma_f32_16x16x32_bf16 v[{d}:{d+3}], v[{A}:{A+3}], v[{r}:{r+3}], {c}")
        a(f"s_mov_b32 s{S_D}, 0x3f803f80\nv_mov_b32 v76, 0\nv_mov_b32 v77, 0")
        for k in range(4):
            a(f"""
v_cvt_pk_bf16_f32 v72, v{64+2*k}, v{65+2*k}
v_lshlrev_b32 v73, 16, v72
v_and_b32 v72, 0xffff0000, v72
v_lshlrev_b32 v74, 16, v{60+k}
v_and_b32 v75, 0xffff0000, v{60+k}
v_add_f32 v73, v73, v74
v_add_f32 v72, v72, v75
v_cvt_pk_bf16_f32 v{80+k}, v73, v72
""")
        for k in range(4):
            a(f"v_dot2_f32_bf16 v76, v{80+k}, s{S_D}, v76\nv_dot2_f32_bf16 v77, v{80+k}, v{80+k}, v77")
        self.allred2("v_add_f32", 76, 77, 78, 79, ['q1', 'q2', 4, 8, 16, 32])
        self.ln_stats(76, 77, 78, 79, 72)
        for k in range(4):
            a(f"v_lshlrev_b32 v72, 16, v{80+k}\nv_and_b32 v73, 0xffff0000, v{80+k}")
            self.ln_norm_pair(80 + k, 72, 73, 78, 79)
        a("ds_write_b64 v8, v[80:81]\nds_write_b64 v8, v[82:83] offset:512")
        self.lds_set(F_XNF, 1, 6, 15)
        self.lds_wait4(F_XNF, 1, 1, 16)
        for s in range(16):
            a(f"ds_read_b128 v[{64+4*s}:{67+4*s}], v13 offset:{s*64}")
            if s == 14: a("s_waitcnt lgkmcnt(14)")
        for s in range(16):
            a(f"s_waitcnt lgkmcnt({min(15-s, 14)})")
            d = 16 + 4 * (s & 1)
            c = "0" if s < 2 else f"v[{d}:{d+3}]"
            a(f"v_mfma_f32_16x16x32_bf16 v[{d}:{d+3}], v[{128+4*s}:{131+4*s}], v[{64+4*s}:{67+4*s}], {c}")
        a(f"""
v_lshlrev_b32 v24, 6, v2
v_lshl_add_u32 v24, v4, 4, v24
v_add_u32 v25, v24, v1
s_lshl_b32 s{S_T0}, s{S_W}, 8
v_add_u32 v25, s{S_T0}, v25
v_lshrrev_b32 v26, 5, v0
v_lshlrev_b32 v26, 8, v26
v_lshl_add_u32 v26, v2, 6, v26
v_and_b32 v27, 1, v4
v_lshl_add_u32 v26, v27, 5, v26
v_add_u32 v26, v26, v1
""")
        for k in range(4):
            a(f"v_add_f32 v{16+k}, v{16+k}, v{20+k}")
        a(f"""
s_mov_b64 exec, s[{S_M0}:{S_M0+1}]
ds_write_b128 v25, v[16:19] offset:{O_GU}
s_mov_b64 exec, -1
""")
        self.lds_set(F_GUF, 1, 6, 15)
        a(f"""
s_lshl_b32 s{S_C}, s{S_X}, 3
s_add_u32 s{S_C}, s{S_C}, s{S_I}
s_lshl_b32 s{S_C}, s{S_C}, 12
s_lshl_b32 s{S_T0}, s{S_W}, 10
s_add_u32 s{S_C}, s{S_C}, s{S_T0}
s_add_u32 s{S_C}, s{S_C}, {OUTP}
""")
        self.lds_wait4(F_GUF, 1, 1, 20, extra=f"""ds_read_b128 v[32:35], v26 offset:{O_GU}
ds_read_b128 v[36:39], v26 offset:{O_GU+16}
ds_read_b128 v[40:43], v26 offset:{O_GU+512}
ds_read_b128 v[44:47], v26 offset:{O_GU+528}""")
        for k in range(4):
            a(f"""
v_cvt_pk_bf16_f32 v16, v{32+2*k}, v{33+2*k}
v_cvt_pk_bf16_f32 v17, v{40+2*k}, v{41+2*k}
v_lshlrev_b32 v18, 16, v16
v_and_b32 v16, 0xffff0000, v16
v_lshlrev_b32 v19, 16, v17
v_and_b32 v17, 0xffff0000, v17
v_max_f32 v18, 0, v18
v_max_f32 v16, 0, v16
v_mul_f32 v18, v18, v19
v_mul_f32 v16, v16, v17
v_cvt_pk_bf16_f32 v{48+k}, v18, v16
""")
        for tau in range(8):
            a(f"v_mfma_f32_16x16x32_bf16 v[{64+4*tau}:{67+4*tau}], v[{192+4*tau}:{195+4*tau}], v[48:51], 0")
        for tau in range(8):
            a(f"v_cvt_pk_bf16_f32 v{96+2*tau}, v{64+4*tau}, v{65+4*tau}\nv_cvt_pk_bf16_f32 v{97+2*tau}, v{66+4*tau}, v{67+4*tau}")
        for hb in range(2):
            for k in range(2):
                d = 16 + 2 * hb + k
                b = 96 + 8 * hb + k
                a(f"v_cndmask_b32 v{d}, v{b}, v{b+2}, s[{S_M1}:{S_M1+1}]")
                a(f"v_cndmask_b32 v{d}, v{d}, v{b+4}, s[{S_M2}:{S_M2+1}]")
                a(f"v_cndmask_b32 v{d}, v{d}, v{b+6}, s[{S_M3}:{S_M3+1}]")
                a(f"v_min_u32 v{d}, -2, v{d}")
        a(f"buffer_store_dwordx4 v[16:19], v7, s[{SRD_WS}:{SRD_WS+3}], s{S_C} offen sc1")
        self.stamp(14)
        a("s_branch L_cend")

    def final(self):
        a = self.a
        a("L_final:")
        a(srd(SRD_A, P['x'], SIZES['x']))
        a(srd(SRD_B, P['out'], SIZES['out']))
        a(f"""
s_lshl_b32 s{S_A}, s{S_X}, 1
s_add_u32 s{S_A}, s{S_A}, s{S_J}       ; rho
v_lshlrev_b32 v8, 10, v2
v_lshl_add_u32 v8, v3, 5, v8
v_and_b32 v9, 1, v4
v_lshl_add_u32 v8, v9, 7, v8
s_lshr_b32 s{S_B}, s{S_A}, 2
s_lshl_b32 s{S_B}, s{S_B}, 8
s_and_b32 s{S_T0}, s{S_A}, 3
s_lshl_b32 s{S_T0}, s{S_T0}, 3
s_add_u32 s{S_B}, s{S_B}, s{S_T0}
buffer_load_dwordx2 v[10:11], v8, s[{SRD_A}:{SRD_A+3}], s{S_B} offen
v_lshlrev_b32 v12, 12, v4
v_lshl_add_u32 v12, v5, 4, v12
s_lshl_b32 s{S_C}, s{S_A}, 8
s_add_u32 s{S_C}, s{S_C}, {OUTP}
""")
        self.ident(48, None, 14)
        lp, dn = self.L("PF"), self.L("PD")
        a(f"{lp}:\ns_add_u32 s{S_D}, s{S_B}, {AT}")
        for x in range(8):
            a(f"buffer_load_dwordx2 v[{16+2*x}:{17+2*x}], v8, s[{SRD_WS}:{SRD_WS+3}], s{S_D} offen sc1")
            if x < 7: a(f"s_add_u32 s{S_D}, s{S_D}, 4096")
        a("s_waitcnt vmcnt(0)")
        self.chk_sentinel(range(16, 32), 15)
        a(f"s_cbranch_vccz {dn}")
        self.bound()
        a(f"s_sleep 8\ns_branch {lp}\n{dn}:")
        for k in range(2):
            a(f"v_lshlrev_b32 v{32+2*k}, 16, v{16+k}\nv_and_b32 v{33+2*k}, 0xffff0000, v{16+k}")
            for x in range(1, 8):
                a(f"v_lshlrev_b32 v36, 16, v{16+2*x+k}\nv_and_b32 v37, 0xffff0000, v{16+2*x+k}")
                a(f"v_add_f32 v{32+2*k}, v{32+2*k}, v36\nv_add_f32 v{33+2*k}, v{33+2*k}, v37")
        for k in range(2):
            a(f"""
v_cvt_pk_bf16_f32 v36, v{32+2*k}, v{33+2*k}
v_lshlrev_b32 v37, 16, v36
v_and_b32 v36, 0xffff0000, v36
v_lshlrev_b32 v38, 16, v{10+k}
v_and_b32 v39, 0xffff0000, v{10+k}
v_add_f32 v37, v37, v38
v_add_f32 v36, v36, v39
v_cvt_pk_bf16_f32 v36, v37, v36
v_lshlrev_b32 v{32+2*k}, 16, v36
v_and_b32 v{33+2*k}, 0xffff0000, v36
""")
        lp, dn = self.L("PF"), self.L("PD")
        a(f"{lp}:\ns_mov_b32 s{S_D}, s{S_C}")
        for i in range(14):
            a(f"buffer_load_dwordx4 v[{64+4*i}:{67+4*i}], v12, s[{SRD_WS}:{SRD_WS+3}], s{S_D} offen sc1")
            if i < 13: a(f"s_add_u32 s{S_D}, s{S_D}, 16384")
        a("s_waitcnt vmcnt(0)")
        self.chk_sentinel(range(64, 120), 15)
        a(f"s_cbranch_vccz {dn}")
        self.bound()
        a(f"s_sleep 2\ns_branch {lp}\n{dn}:")
        for i in range(14):
            d = 40 + 4 * (i & 1)
            c = "0" if i < 2 else f"v[{d}:{d+3}]"
            a(f"v_mfma_f32_16x16x32_bf16 v[{d}:{d+3}], v[48:51], v[{64+4*i}:{67+4*i}], {c}")
        for k in range(4):
            a(f"v_add_f32 v{40+k}, v{40+k}, v{44+k}")
        for k in range(2):
            a(f"""
v_cvt_pk_bf16_f32 v36, v{40+2*k}, v{41+2*k}
v_lshlrev_b32 v37, 16, v36
v_and_b32 v36, 0xffff0000, v36
v_add_f32 v37, v37, v{32+2*k}
v_add_f32 v36, v36, v{33+2*k}
v_cvt_pk_bf16_f32 v{44+k}, v37, v36
""")
        a(f"""
s_mov_b32 exec_hi, 0
buffer_store_dwordx2 v[44:45], v8, s[{SRD_B}:{SRD_B+3}], s{S_B} offen
s_mov_b64 exec, -1
s_cmp_lg_u32 s2, 0
s_cbranch_scc1 L_noep
v_mov_b32 v36, s{S_G}
v_mov_b32 v37, 0
s_mov_b64 exec, 1
buffer_store_dword v36, v37, s[{SRD_WS}:{SRD_WS+3}], 0 offen sc1
s_mov_b64 exec, -1
L_noep:
""")
        self.stamp(14)
        a("s_branch L_cend")

    def build(self):
        a = self.a
        self.prologue()
        self.p1()
        if self.stop > 2:
            self.p3()
        if self.stop > 3:
            self.pc()
        if self.stop > 4:
            a(f"""
s_cmp_lt_u32 s{S_J}, 16
s_cbranch_scc1 L_p4
s_cmp_lt_u32 s{S_J}, 24
s_cbranch_scc1 L_p5
s_cmp_lg_u32 s{S_X}, 7
s_cbranch_scc1 L_mlp
""")
        a("L_cend:")
        self.finish_compute()
        if self.stop > 4:
            self.p4(); self.p5(); self.mlp(); self.final()
        self.aux()
        self.loader()
        a("L_done:\ns_endpgm\nL_codeend:")
        a(kdesc(NAME + "_kernel", vgpr=256, sgpr=102))
        text, n = hazard.run(a.text())
        return text

def finalize(text, npf):
    pf = []
    for i in range(npf):
        pf.append(f"global_load_dword v{100+i}, v2, s[{S_EX}:{S_EX+1}]")
        if i < npf - 1: pf.append("v_add_u32 v2, 8192, v2")
    return text.replace(";PREFETCH", "\n".join(pf))

if __name__ == "__main__":
    import argparse, subprocess
    ap = argparse.ArgumentParser()
    ap.add_argument("out")
    ap.add_argument("--stamps", action="store_true")
    ap.add_argument("--stop", type=int, default=99)
    ap.add_argument("--lmode", action="store_true")
    ap.add_argument("--nfront", type=int, default=20)
    ap.add_argument("--nrole", type=int, default=12)
    ap.add_argument("--nopf", action="store_true")
    ap.add_argument("--dbg", action="store_true")
    o = ap.parse_args()
    g = G(stamps=o.stamps, stop=o.stop, lmode=o.lmode, nfront=o.nfront, nrole=o.nrole, prefetch=not o.nopf, dbg=o.dbg)
    text = g.build()
    open("_g.s", "w").write(finalize(text, 1))
    subprocess.check_call(["clang", "-x", "assembler", "-target", "amdgcn-amd-amdhsa", "-mcpu=gfx950", "-c", "_g.s", "-o", "_g.o"])
    out = subprocess.check_output(["llvm-objdump", "-h", "_g.o"]).decode()
    size = [int(l.split()[2], 16) for l in out.split("\n") if " .text" in l][0]
    npf = (size + 8191) // 8192
    text = finalize(text, npf)
    pad = npf * 8192 + 512 - size
    text = text.replace("L_codeend:", f"L_codeend:\n.fill {pad//4}, 4, 0xbf810000")
    open(o.out, "w").write(text)
    print("code bytes", size, "prefetch chunks", npf)
```
